```python
import torch

def _softmax(x, axis=-1):
    return torch.softmax(x, dim=axis)
def _gelu(x):
    return torch.nn.functional.gelu(x, approximate="tanh")
def _silu(x):
    return torch.nn.functional.silu(x)
def _sigmoid(x):
    return torch.sigmoid(x)
def _layernorm(x, axis=-1, eps=1e-5):
    m = x.mean(dim=axis, keepdim=True)
    v = x.var(dim=axis, keepdim=True, unbiased=False)
    return (x - m) / torch.sqrt(v + eps)
def _scatter_add(tgt, idx, src, axis=0):
    return tgt.clone().index_add_(axis, idx, src)
def _segment_sum(src, seg, n):
    out = torch.zeros((n,) + src.shape[1:], dtype=src.dtype)
    return out.index_add_(0, seg, src)
def _pad(x, pw):
    flat = tuple(v for pair in reversed(pw) for v in pair)
    return torch.nn.functional.pad(x, flat)

kernel_name = 'recurrent_scan__compressed_kv_cla__dense_activation_squared_relu__prompt'

def setup_inputs():

    _w = (lambda a: (lambda t: t.to(torch.bfloat16) if t.is_floating_point() else t)(torch.as_tensor(a)))
    def _A_setup():
        B, H, Sq, Sk, D, M = 1, 32, 2048, 2048, 128, 512
        Dc = 4 * D
        return {
            "x": _w((lambda *s: torch.randn(*s, dtype=torch.bfloat16) * 0.05)(B, Sq, M)),
            "c_kv": _w((lambda *s: torch.randn(*s, dtype=torch.bfloat16) * 0.2)(B, Sk, Dc)),
            "w_q": _w((lambda *s: torch.randn(*s, dtype=torch.bfloat16) * 3.2)(M, H, D) * (M ** -0.5)),
            "w_uk": _w((lambda *s: torch.randn(*s, dtype=torch.bfloat16) * 3.2)(Dc, H, D) * (Dc ** -0.5)),
            "w_uv": _w((lambda *s: torch.randn(*s, dtype=torch.bfloat16) * 0.2)(Dc, H, D) * (Dc ** -0.5)),
            "w_o": _w((lambda *s: torch.randn(*s, dtype=torch.bfloat16) * 0.2)(H, D, M) * ((H * D) ** -0.5)),
        }
    _A_in = _A_setup()

    def _B_setup():
        B, S, D, F = 1, 2048, 512, 1792
        return {
            "x": _w((lambda *s: torch.randn(*s, dtype=torch.bfloat16) * 0.05)(B, S, D)),
            "w1": _w((lambda *s: torch.randn(*s, dtype=torch.bfloat16) * 0.1)(D, F)),
            "b1": _w((lambda *s: torch.randn(*s, dtype=torch.bfloat16) * 0.8)(F)),
            "w2": _w((lambda *s: torch.randn(*s, dtype=torch.bfloat16) * 0.1)(F, D)),
            "b2": _w((lambda *s: torch.randn(*s, dtype=torch.bfloat16) * 6.4)(D)),
        }
    _B_in = _B_setup()

    return {
        "A_x": _A_in["x"],
        "A_c_kv": _A_in["c_kv"],
        "A_w_q": _A_in["w_q"],
        "A_w_uk": _A_in["w_uk"],
        "A_w_uv": _A_in["w_uv"],
        "A_w_o": _A_in["w_o"],
        "B_x": _B_in["x"],
        "B_w1": _B_in["w1"],
        "B_b1": _B_in["b1"],
        "B_w2": _B_in["w2"],
        "B_b2": _B_in["b2"],
    }

def reference(A_x, A_c_kv, A_w_q, A_w_uk, A_w_uv, A_w_o, B_x, B_w1, B_b1, B_w2, B_b2):
    def _A_ref(x, c_kv, w_q, w_uk, w_uv, w_o):
        B, Sq, M = x.shape[0], x.shape[1], x.shape[2]
        Sk = c_kv.shape[1]
        H, D = w_q.shape[1], w_q.shape[2]
        q = torch.einsum("bqm,mhd->bhqd", x, w_q)
        k = torch.einsum("bkc,chd->bhkd", c_kv, w_uk)
        v = torch.einsum("bkc,chd->bhkd", c_kv, w_uv)
        scores = torch.einsum("bhqd,bhkd->bhqk", q, k) * (D ** -0.5)
        off = Sk - Sq
        qi = torch.arange(Sq)[:, None]
        kj = torch.arange(Sk)[None, :]
        cmask = kj <= (qi + off)
        scores = torch.where(cmask[None, None], scores, -1e9)
        p = _softmax(scores, axis=-1)
        ctx = torch.einsum("bhqk,bhkd->bhqd", p, v)
        return torch.einsum("bhqd,hdm->bqm", ctx, w_o)

    def _B_ref(x, w1, b1, w2, b2):
        h = torch.einsum("bsd,df->bsf", x, w1) + b1
        zero = torch.zeros_like(h)
        r = torch.where(h > zero, h, zero)
        h = r * r
        out = torch.einsum("bsf,fd->bsd", h, w2) + b2
        return out

    x = A_x
    xn = _layernorm(x, axis=-1)
    s = _A_ref(xn, A_c_kv, A_w_q, A_w_uk, A_w_uv, A_w_o)
    g = _silu(_B_ref(xn, B_w1, B_b1, B_w2, B_b2))
    return x + s * g
```

```python
import re, sys


class Em:
    def __init__(self):
        self.lines = []
        self.vm_n = 0
        self.vm_tag = {}
        self.vm_done = 0

    def i(self, text):
        for t in text.split("\n"):
            t = t.strip()
            if t:
                self.lines.append(t)

    def c(self, text):
        self.lines.append("; " + text)

    def label(self, name):
        self.lines.append(name + ":")

    def vm(self, text, tag=None):
        self.lines.append(text)
        self.vm_n += 1
        if self.vm_n - self.vm_done > 63 and getattr(self, "strict", False):
            print("VMCNT overflow risk at", text, file=sys.stderr)
        if tag is not None:
            self.vm_tag[tag] = self.vm_n

    def wvm(self, *tags, force=False):
        idx = max(self.vm_tag[t] for t in tags)
        if idx <= self.vm_done and not force:
            return False
        n = min(self.vm_n - idx, 63)
        self.lines.append(f"s_waitcnt vmcnt({n})")
        self.vm_done = max(self.vm_done, self.vm_n - n)
        return True

    def wvm_all(self):
        self.lines.append("s_waitcnt vmcnt(0)")
        self.vm_done = self.vm_n

    def covered(self, tag):
        return self.vm_tag[tag] <= self.vm_done

    def do(self, obj):
        if callable(obj):
            obj(self)
        else:
            self.i(obj)


def VM(text, tag=None):
    return lambda e: e.vm(text, tag)


def WVM(*tags):
    return lambda e: e.wvm(*tags)


class Item:
    __slots__ = ("pos", "cost", "obj", "stream", "dl")

    def __init__(self, pos, cost, obj, stream=None, dl=None):
        self.pos, self.cost, self.obj, self.stream, self.dl = pos, cost, obj, stream, dl


def pack(em, mf, items, pre=None, cap=8, name="", verbose=False):
    pre = pre or {}
    N = len(mf)
    capv = [cap] * N
    for k, lst in pre.items():
        if k >= 1:
            capv[k - 1] -= sum(c for c, _ in lst)
    gaps = [[] for _ in range(N)]
    last = {}
    over = 0
    for it in sorted(items, key=lambda x: x.pos):
        g = max(0, int(it.pos))
        if it.stream is not None:
            g = max(g, last.get(it.stream, 0))
        dl = N - 1 if it.dl is None else min(it.dl, N - 1)
        g0 = g
        while g <= dl and capv[g] < min(it.cost, cap):
            g += 1
        if g > dl:
            lo = min(g0, dl)
            g = max(range(lo, dl + 1), key=lambda x: (capv[x], -x))
            over += 1
        capv[g] -= it.cost
        gaps[g].append(it)
        if it.stream is not None:
            last[it.stream] = g
    excess = sum(-c for c in capv if c < 0)
    if verbose or over:
        print(f"[pack {name}] N={N} overflow_items={over} excess_cycles={excess} free={sum(c for c in capv if c > 0)}", file=sys.stderr)
    for k in range(N):
        for _, o in pre.get(k, []):
            em.do(o)
        em.i(mf[k])
        for it in gaps[k]:
            em.do(it.obj)
    for _, o in pre.get(N, []):
        em.do(o)


_REG = re.compile(r"\b([vas])(\d+)\b|\b([vas])\[(\d+):(\d+)\]")


def regs(op):
    out = set()
    for m in _REG.finditer(op):
        if m.group(1):
            out.add((m.group(1), int(m.group(2))))
        else:
            for r in range(int(m.group(4)), int(m.group(5)) + 1):
                out.add((m.group(3), r))
    if re.search(r"\bvcc\b", op):
        out.add(("s", "vcc"))
    if re.search(r"\bm0\b", op):
        out.add(("s", "m0"))
    if re.search(r"\bexec\b", op):
        out.add(("s", "exec"))
    return out


TRANS = ("v_exp_f32", "v_log_f32", "v_rcp_f32", "v_rsq_f32", "v_sqrt_f32")


def parse(line):
    s = line.split(";")[0].strip()
    if not s or s.endswith(":") or s.startswith("."):
        return None
    parts = s.split(None, 1)
    mn = parts[0]
    ops = [o.strip() for o in parts[1].split(",")] if len(parts) > 1 else []
    d = dict(mn=mn, w=set(), r=set(), kind="other", line=s, states=1)
    if mn == "s_nop":
        d["states"] = int(ops[0]) + 1
        return d
    if mn.startswith("v_mfma"):
        d["kind"] = "mfma"
        d["w"] = regs(ops[0]); d["A"] = regs(ops[1]); d["B"] = regs(ops[2]); d["C"] = regs(ops[3])
        d["r"] = d["A"] | d["B"] | d["C"]
        d["passes"] = 4 if "16x16" in mn else 8
        return d
    if mn.startswith("buffer_") or mn.startswith("global_"):
        d["kind"] = "vmem"
        lds = s.endswith(" lds") or " lds " in s
        if mn.startswith("buffer_load") and lds:
            d["r"] = regs(",".join(ops)) | {("s", "m0")}
            d["dma"] = True
        elif "load" in mn:
            d["w"] = regs(ops[0]); d["r"] = regs(",".join(ops[1:]))
        elif mn in ("buffer_inv", "buffer_wbl2"):
            pass
        else:
            d["r"] = regs(",".join(ops))
            if mn.endswith("x4") or mn.endswith("x3"):
                d["sdata"] = regs(ops[0])
        return d
    if mn.startswith("ds_"):
        d["kind"] = "ds"
        if mn.startswith("ds_read") or mn.startswith("ds_bpermute") or mn.startswith("ds_swizzle"):
            d["w"] = regs(ops[0]); d["r"] = regs(",".join(ops[1:]))
        else:
            d["r"] = regs(",".join(ops))
        return d
    if mn.startswith("v_"):
        d["kind"] = "valu"
        if mn.startswith("v_cmp"):
            d["w"] = regs(ops[0]); d["r"] = regs(",".join(ops[1:]))
        elif mn.startswith("v_permlane"):
            d["w"] = regs(ops[0]) | regs(ops[1]); d["r"] = set(d["w"]); d["perm"] = True
        elif mn.startswith("v_readfirstlane") or mn.startswith("v_readlane"):
            d["w"] = regs(ops[0]); d["r"] = regs(",".join(ops[1:])); d["rl"] = True
        else:
            d["w"] = regs(ops[0]); d["r"] = regs(",".join(ops[1:]))
            if mn.startswith("v_fmac") or mn.startswith("v_dot2c"):
                d["r"] |= d["w"]
        if "dpp" in mn or "row_" in s:
            d["dpp"] = True
            d["r"] |= d["w"]
        d["trans"] = any(mn.startswith(t) for t in TRANS)
        return d
    if mn.startswith("s_"):
        d["kind"] = "salu"
        if mn.startswith("s_cmp") or mn.startswith("s_bitcmp") or mn.startswith("s_cbranch") or mn in ("s_waitcnt", "s_barrier", "s_branch", "s_endpgm", "s_setpc_b64", "s_sleep", "s_setprio"):
            d["r"] = regs(",".join(ops))
        else:
            d["w"] = regs(ops[0]) if ops else set(); d["r"] = regs(",".join(ops[1:]))
        return d
    return d


def check_hazards(lines, name=""):
    ins = [p for p in (parse(l) for l in lines) if p]
    errs = []
    pos = []
    c = 0
    for p in ins:
        pos.append(c)
        c += p["states"]

    def dist(a, b):
        return pos[b] - pos[a] - ins[a]["states"]

    W = 24
    for b, q in enumerate(ins):
        for a in range(b - 1, max(-1, b - W), -1):
            p = ins[a]
            dd = dist(a, b)
            if dd >= 20:
                break
            need = 0
            why = ""
            vw = {x for x in p["w"] if x[0] in "va"}
            sw = {x for x in p["w"] if x[0] == "s"}
            if p["kind"] == "mfma":
                n1 = {4: 8, 8: 12}[p["passes"]]
                if q["kind"] == "mfma":
                    if p["w"] & (q["A"] | q["B"]):
                        need, why = n1, "mfmaD->mfma A/B"
                    elif p["w"] & q["C"] and p["w"] != q["C"]:
                        need, why = {4: 6, 8: 10}[p["passes"]], "mfmaD->mfma C overlap"
                    elif p["w"] & q["w"] and p["w"] != q["C"]:
                        need, why = n1, "mfmaD->mfma WAW (conservative)"
                elif q["kind"] in ("valu", "vmem", "ds"):
                    if p["w"] & (q["r"] | q["w"]):
                        need, why = n1, "mfmaD->valu/mem"
                    elif q["kind"] == "valu" and p["C"] & q["w"]:
                        need, why = {4: 3, 8: 7}[p["passes"]], "mfma C read -> valu write"
            if p["kind"] == "valu":
                if q["kind"] == "mfma" and vw & q["r"]:
                    need, why = 2, "valu->mfma"
                if q["kind"] == "valu":
                    if p.get("trans") and not q.get("trans") and vw & q["r"]:
                        need, why = max(need, 1), "trans->valu"
                    if q.get("perm") and vw & q["r"]:
                        need, why = 2, "valu->permlane"
                    if q.get("dpp") and vw & q["r"]:
                        need, why = 2, "valu->dpp"
                    if q.get("rl") and vw & q["r"]:
                        need, why = max(need, 1), "valu->readlane"
                    if sw & q["r"]:
                        need, why = 2, "valu sgpr->valu"
                if q["kind"] == "vmem" and sw & q["r"]:
                    need, why = 5, "valu sgpr->vmem"
                if q["kind"] == "salu" and sw & q["r"] and not q["mn"].startswith("s_cbranch"):
                    need, why = 1, "valu sgpr->salu (pad)"
            if p["kind"] == "salu" and ("s", "m0") in p["w"] and q.get("dma"):
                need, why = 1, "m0->dma"
            if p.get("sdata") and q["kind"] in ("valu", "mfma", "ds", "vmem") and p["sdata"] & q["w"]:
                need, why = 2, "store data WAR"
            if need > dd:
                errs.append(f"{name}: need {need} have {dd} [{why}]\n    {p['line']}\n    {q['line']}")
    return errs
```

```python
import sys, struct
from asmlib import Em, Item, pack, VM, WVM, check_hazards

NAME = "recurrent_scan__compressed_kv_cla__dense_activation_squared_relu__prompt"
opt = dict(stop=99, stamps=0, out="k.s", verbose=0, forcefail=0)
for a in sys.argv[1:]:
    k, v = a.split("=")
    opt[k] = v if k == "out" else int(v)

FLG, XN, KV, HH, CTX, PART, STAMP = 0, 1 << 20, 4 << 20, 36 << 20, 44 << 20, 60 << 20, 80 << 20
HUGE = 0x40000000
F_KV, F_H, F_CTX, F_PART = 0, 32 * 128, 64 * 128, 96 * 128
NFLAGLINES = 160


def f32(x):
    return "0x%08x" % struct.unpack("<I", struct.pack("<f", x))[0]


def v(i, n=1): return f"v{i}" if n == 1 else f"v[{i}:{i+n-1}]"
def a(i, n=1): return f"a{i}" if n == 1 else f"a[{i}:{i+n-1}]"
def s(i, n=1): return f"s{i}" if n == 1 else f"s[{i}:{i+n-1}]"


WS, SX, SC, SWQ, SWK, SWV, SWO, SW1, SW2, SOUT, SB1, SB2, SDBG = [s(4 + 4 * k, 4) for k in range(13)]
sB, sW, sH, sI = "s2", "s56", "s57", "s58"
sRET = "s[60:61]"
sEV = "s[62:63]"
sCM = "s[64:65]"
sFAIL = "s[66:67]"
sREDO = "s59"
sW4K = "s68"
sKVH = "s69"
sTA, sBLK0, sBLKB, sLO, sDEL = "s70", "s71", "s72", "s73", "s74"
sGM, sDM, sGT, sDT = "s75", "s76", "s77", "s78"
sN2, sMA, sMB = "s79", "s80", "s81"
sCB = "s82"
sWB = "s83"
sXB = "s84"
sW1B = "s85"
sR, sCc, sQ = "s86", "s87", "s88"
sTRI = ["s[92:93]", "s[94:95]", "s[96:97]", "s[98:99]"]
T0, T1, T2, T3 = "s89", "s90", "s91", "s3"
sSPIN = "s100"
sW8K = "s86"
sST = "s101"

vL16, vLANE = "v255", "v254"
vFLAG, vFOFF, vONE = "v253", "v252", "v251"

e = Em()
e.strict = True
stubs = []
nlab = [0]


def newlab(p):
    nlab[0] += 1
    return f"L_{p}_{nlab[0]}"


def stamp(k):
    if not opt["stamps"]:
        return
    e.i(f"s_memtime s[0:1]")
    e.i("s_waitcnt lgkmcnt(0)")
    e.i(f"v_mov_b32 v250, s0")
    e.i(f"v_mov_b32 v249, {sST}")
    e.i(f"v_cmp_eq_u32 vcc, 0, {vLANE}")
    e.i(f"v_mov_b32 v248, {HUGE}")
    e.i("s_nop 0")
    e.i(f"v_cndmask_b32 v249, v248, v249, vcc")
    e.vm(f"buffer_store_dword v250, v249, {WS}, 0 offen offset:{4*k}")


def flag_load(off_expr_emit, nd, tag, srd=WS):
    off_expr_emit()
    e.i(f"v_min_u32 {vFOFF}, {nd-1}, {vLANE}")
    e.i(f"v_lshlrev_b32 {vFOFF}, 2, {vFOFF}")
    e.i(f"v_add_u32 {vFOFF}, {T0}, {vFOFF}")
    e.vm(f"buffer_load_dword {vFLAG}, {vFOFF}, {srd}, 0 offen sc1", tag)


def flag_check(tag, want, srd=WS):
    lab, ret = newlab("spin"), newlab("spinret")
    e.wvm(tag)
    e.i(f"v_cmp_ne_u32 vcc, {want}, {vFLAG}")
    e.i("s_nop 0")
    e.i(f"s_cbranch_vccnz {lab}")
    e.label(ret)
    st = Em()
    st.label(lab)
    st.i(f"s_mov_b32 {sSPIN}, 0")
    st.label(lab + "_l")
    st.i(f"s_add_u32 {sSPIN}, {sSPIN}, 1")
    st.i(f"s_cmp_gt_u32 {sSPIN}, 0x20000")
    st.i(f"s_cbranch_scc1 {ret}")
    st.i("s_sleep 2")
    st.i(f"buffer_load_dword {vFLAG}, {vFOFF}, {srd}, 0 offen sc1")
    st.i("s_waitcnt vmcnt(0)")
    st.i(f"v_cmp_ne_u32 vcc, {want}, {vFLAG}")
    st.i("s_nop 0")
    st.i(f"s_cbranch_vccnz {lab}_l")
    st.i(f"s_branch {ret}")
    stubs.append(st)


def flag_set(em, off_sgpr, tmp="v250"):
    em.i(f"v_mov_b32 {tmp}, {off_sgpr}")
    em.vm(f"buffer_store_dword {vONE}, {tmp}, {WS}, 0 offen sc1")


def finish():
    e.wvm_all()
    e.i("s_endpgm")


e.i(f"s_cmp_ge_u32 {sB}, 256")
e.i("s_cbranch_scc1 L_exit")
e.i("s_load_dwordx16 s[64:79], s[0:1], 0")
e.i("s_load_dwordx8 s[80:87], s[0:1], 64")
e.i("s_load_dwordx4 s[88:91], s[0:1], 96")
e.i(f"v_and_b32 {vLANE}, 63, v0")
e.i(f"v_lshrrev_b32 v1, 6, v0")
e.i(f"v_lshlrev_b32 {vL16}, 4, {vLANE}")
e.i(f"v_readfirstlane_b32 {sW}, v1")
e.i(f"s_and_b32 {sH}, {sB}, 7")
e.i(f"s_lshl_b32 {sH}, {sH}, 2")
e.i(f"s_lshr_b32 s3, {sB}, 3")
e.i(f"s_and_b32 s3, s3, 3")
e.i(f"s_add_u32 {sH}, {sH}, s3")
e.i(f"s_lshr_b32 {sI}, {sB}, 5")
e.i(f"s_mov_b32 {sREDO}, 0")
e.i(f"v_mov_b32 {vONE}, 1")

vOW = [240, 241, 242, 243]
vOC = [244, 245, 246, 247]
e.i(f"v_bfe_u32 v2, {vLANE}, 2, 2")
e.i(f"v_lshlrev_b32 v2, 13, v2")
e.i(f"v_lshrrev_b32 v3, 4, {vLANE}")
e.i(f"v_lshl_add_u32 v2, v3, 6, v2")
e.i(f"v_and_b32 v4, 3, {vLANE}")
e.i(f"v_lshl_add_u32 v{vOW[0]}, v4, 4, v2")
e.i(f"v_xor_b32 v5, 32, v{vOW[0]}")
e.i(f"v_add_u32 v{vOW[1]}, {31744}, v{vOW[0]}")
e.i(f"v_add_u32 v{vOW[2]}, {2*31744}, v5")
e.i(f"v_add_u32 v{vOW[3]}, {3*31744}, v5")
e.i(f"v_and_b32 v4, 7, {vLANE}")
e.i(f"v_xor_b32 v4, v4, v3")
e.i(f"v_lshrrev_b32 v2, 3, {vLANE}")
e.i(f"v_lshlrev_b32 v2, 10, v2")
e.i(f"v_lshl_add_u32 v{vOC[0]}, v4, 4, v2")
e.i(f"v_xor_b32 v5, 64, v{vOC[0]}")
e.i(f"v_add_u32 v{vOC[1]}, {7168}, v5")
e.i(f"v_add_u32 v{vOC[2]}, {2*7168}, v{vOC[0]}")
e.i(f"v_add_u32 v{vOC[3]}, {3*7168}, v5")
e.i("s_waitcnt lgkmcnt(0)")
for dst, src, nb in [(4, 90, 268435456), (8, 64, 2097152), (12, 66, 2097152), (16, 68, 4194304), (20, 70, 4194304),
                     (24, 72, 4194304), (28, 74, 4194304), (32, 78, 1835008), (36, 82, 1835008), (40, 86, 2097152),
                     (44, 80, 3584), (48, 84, 1024), (52, 88, 256)]:
    e.i(f"s_mov_b32 s{dst}, s{src}")
    e.i(f"s_mov_b32 s{dst+1}, s{src+1}")
    e.i(f"s_mov_b32 s{dst+2}, {nb}")
    e.i(f"s_mov_b32 s{dst+3}, 0x20000")
e.i(f"s_lshl_b32 {sW4K}, {sW}, 12")
e.i(f"s_lshl_b32 {sW8K}, {sW}, 13")
e.i(f"s_lshl_b32 {sCB}, {sI}, 18")
e.i(f"s_lshl_b32 {T0}, {sW}, 16")
e.i(f"s_add_u32 {sCB}, {sCB}, {T0}")
e.i(f"s_lshl_b32 {sWB}, {sH}, 8")
e.i(f"s_lshl_b32 {T0}, {sW}, 17")
e.i(f"s_add_u32 {sWB}, {sWB}, {T0}")
if opt["stamps"]:
    e.i(f"s_lshl_b32 {sST}, {sB}, 2")
    e.i(f"s_add_u32 {sST}, {sST}, {sW}")
    e.i(f"s_lshl_b32 {sST}, {sST}, 7")
    e.i(f"s_add_u32 {sST}, {sST}, {STAMP}")
stamp(0)

e.i(f"s_lshl_b32 {T1}, {sB}, 3")
e.i(f"s_lshl_b32 {T0}, {sW}, 1")
e.i(f"s_add_u32 {T1}, {T1}, {T0}")
e.i(f"s_lshl_b32 {T0}, {T1}, 10")
e.vm(f"buffer_load_dwordx4 v[8:11], {vL16}, {SX}, {T0} offen", "x")
e.vm(f"buffer_load_dwordx4 v[12:15], {vL16}, {SX}, {T0} offen offset:1024", "x")

WSLOT = [65536, 98304, 131072]
sTA_, sTB_ = "s70", "s71"


def c_dma(j):
    out = []
    for half in range(2):
        st = sTA_ if half == 0 else sTB_
        out.append((4, f"s_add_u32 m0, {sW8K}, {(j & 1) * 32768 + half * 4096}"))
        out.append((4, f"s_add_u32 {st}, {sCB}, {j*128 + half*32768}"))
        for q in range(4):
            out.append((8, VM(f"buffer_load_dwordx4 v{vOC[q]}, {SC}, {st} offen offset:{q*1024} lds", f"c{j}")))
    return out


def w_dma(j, srds, slotbase, tag):
    out = []
    for p, srd in enumerate(srds):
        st = sTA_ if p == 0 else sTB_
        out.append((4, f"s_add_u32 m0, {sW4K}, {slotbase + p*16384}"))
        out.append((4, f"s_add_u32 {st}, {sWB}, {j*524288}"))
        for q in range(4):
            out.append((8, VM(f"buffer_load_dwordx4 v{vOW[q]}, {srd}, {st} offen offset:{q*1024} lds", tag)))
    return out


def now(lst):
    for _, o in lst:
        e.do(o)


def spread(lst, lo, hi, stream):
    n = len(lst)
    return [Item(lo + (hi - lo) * k / n, c, o, stream) for k, (c, o) in enumerate(lst)]


now(c_dma(0))
now(w_dma(0, [SWK, SWV], WSLOT[0], "w0"))
now(c_dma(1))
now(w_dma(1, [SWK, SWV], WSLOT[1], "w1"))
now(w_dma(2, [SWK, SWV], WSLOT[2], "w2"))

e.i(f"v_and_b32 v2, 31, {vLANE}")
e.i(f"v_lshlrev_b32 v2, 2, v2")
e.i(f"s_lshl_b32 {T0}, {sB}, 7")
e.i(f"s_cmp_lt_u32 {sB}, {NFLAGLINES}")
e.i(f"s_cselect_b32 {T0}, {T0}, {HUGE}")
e.i("v_mov_b32 v3, 0")
e.vm(f"buffer_store_dword v3, v2, {WS}, {T0} offen sc1", "zero")

vTR = [[200, 201], [202, 203], [204, 205]]
vTM = [[206, 207], [208, 209], [210, 211]]
vCR = [212, 213]
vOM = [214, 215]
vBIAS = 216


def emit_inner(dst0, dst1, gshift, t0, t1):
    e.i(f"v_bfe_u32 v{t0}, {vLANE}, 2, 2")
    e.i(f"v_lshlrev_b32 v{t0}, 6, v{t0}")
    e.i(f"v_and_b32 v{t1}, 3, {vLANE}")
    e.i(f"v_lshl_add_u32 v{t0}, v{t1}, 3, v{t0}")
    e.i(f"v_bfe_u32 v{t1}, {vLANE}, 4, 1")
    e.i(f"v_lshl_add_u32 v{t0}, v{t1}, 5, v{t0}")
    e.i(f"v_lshrrev_b32 v{t1}, 4, {vLANE}")
    e.i(f"v_lshl_add_u32 v{dst0}, v{t1}, {gshift}, v{t0}")
    e.i(f"v_xor_b32 v{dst1}, 32, v{dst0}")


def p12_reader_regs():
    emit_inner(2, 3, 11, 4, 5)
    for k in range(3):
        e.i(f"v_add_u32 v{vTR[k][0]}, {WSLOT[k]}, v2")
        e.i(f"v_add_u32 v{vTR[k][1]}, {WSLOT[k]}, v3")
    emit_inner(2, 3, 10, 4, 5)
    for k in range(3):
        e.i(f"v_add_u32 v{vTM[k][0]}, {WSLOT[k] + 16384}, v2")
        e.i(f"v_add_u32 v{vTM[k][1]}, {WSLOT[k] + 16384}, v3")
    e.i(f"v_lshrrev_b32 v2, 5, {vLANE}")
    e.i(f"v_bfe_u32 v3, {vLANE}, 2, 2")
    e.i(f"v_lshl_add_u32 v2, v2, 2, v3")
    e.i(f"v_mul_u32_u24 v2, 3584, v2")
    e.i(f"v_bfe_u32 v3, {vLANE}, 4, 1")
    e.i(f"v_lshl_add_u32 v2, v3, 6, v2")
    e.i(f"v_and_b32 v3, 3, {vLANE}")
    e.i(f"v_lshl_add_u32 v{vOM[0]}, v3, 4, v2")
    e.i(f"v_xor_b32 v3, 32, v{vOM[0]}")
    e.i(f"v_add_u32 v{vOM[1]}, {8*3584 - 1024}, v3")


p12_reader_regs()
e.i(f"v_and_b32 v2, 15, {vLANE}")
e.i(f"v_lshrrev_b32 v3, 1, v2")
e.i(f"v_lshrrev_b32 v4, 4, {vLANE}")
e.i(f"v_xor_b32 v3, v3, v4")
e.i(f"v_lshlrev_b32 v2, 7, v2")
e.i(f"v_lshl_add_u32 v2, v3, 4, v2")
e.i(f"v_add_u32 v{vCR[0]}, {sW8K}, v2")
e.i(f"v_xor_b32 v{vCR[1]}, 64, v{vCR[0]}")

e.wvm("x")


def bf16r(dst, src):
    e.i(f"v_cvt_pk_bf16_f32 {dst}, {src}, {src}")
    e.i(f"v_lshlrev_b32 {dst}, 16, {dst}")


def wave_sum2(r0, r1, s0, s1):
    for sh in ("row_shr:1", "row_shr:2", "row_shr:4", "row_shr:8"):
        e.i("s_nop 0")
        e.i(f"v_add_f32_dpp v{r0}, v{r0}, v{r0} {sh} row_mask:0xf bank_mask:0xf bound_ctrl:0")
        e.i(f"v_add_f32_dpp v{r1}, v{r1}, v{r1} {sh} row_mask:0xf bank_mask:0xf bound_ctrl:0")
    for sh in ("row_bcast:15 row_mask:0xa", "row_bcast:31 row_mask:0xc"):
        e.i("s_nop 0")
        e.i(f"v_add_f32_dpp v{r0}, v{r0}, v{r0} {sh} bank_mask:0xf")
        e.i(f"v_add_f32_dpp v{r1}, v{r1}, v{r1} {sh} bank_mask:0xf")
    e.i("s_nop 0")
    e.i(f"v_readlane_b32 {s0}, v{r0}, 63")
    e.i(f"v_readlane_b32 {s1}, v{r1}, 63")
    e.i("s_nop 1")


XR = [16, 24]
for rr in range(2):
    for k in range(4):
        e.i(f"v_lshlrev_b32 v{XR[rr]+2*k}, 16, v{8+4*rr+k}")
        e.i(f"v_and_b32 v{XR[rr]+2*k+1}, 0xffff0000, v{8+4*rr+k}")
for rr in range(2):
    e.i(f"v_add_f32 v{32+rr}, v{XR[rr]}, v{XR[rr]+1}")
    for k in range(2, 8):
        e.i(f"v_add_f32 v{32+rr}, v{32+rr}, v{XR[rr]+k}")
wave_sum2(32, 33, T0, T2)
for rr, st in ((0, T0), (1, T2)):
    e.i(f"v_mov_b32 v{34+rr}, {st}")
    e.i(f"v_mul_f32 v{34+rr}, {f32(1/512)}, v{34+rr}")
    bf16r(f"v{36+rr}", f"v{34+rr}")
    e.i(f"v_sub_f32 v40, v{XR[rr]}, v{34+rr}")
    e.i(f"v_mul_f32 v{32+rr}, v40, v40")
    for k in range(1, 8):
        e.i(f"v_sub_f32 v40, v{XR[rr]+k}, v{34+rr}")
        e.i(f"v_fmac_f32 v{32+rr}, v40, v40")
wave_sum2(32, 33, T0, T2)
for rr, st in ((0, T0), (1, T2)):
    r = f"v{34+rr}"
    e.i(f"v_mov_b32 {r}, {st}")
    e.i(f"v_mul_f32 {r}, {f32(1/512)}, {r}")
    bf16r(r, r)
    e.i(f"v_add_f32 {r}, {f32(1e-5)}, {r}")
    bf16r(r, r)
    e.i(f"v_sqrt_f32 {r}, {r}")
    e.i("s_nop 0")
    bf16r(r, r)
    e.i(f"v_rcp_f32 {r}, {r}")
    for k in range(4):
        x0, x1 = XR[rr] + 2 * k, XR[rr] + 2 * k + 1
        e.i(f"v_sub_f32 v{x0}, v{x0}, v{36+rr}")
        e.i(f"v_sub_f32 v{x1}, v{x1}, v{36+rr}")
        e.i(f"v_cvt_pk_bf16_f32 v40, v{x0}, v{x1}")
        e.i(f"v_lshlrev_b32 v{x0}, 16, v40")
        e.i(f"v_and_b32 v{x1}, 0xffff0000, v40")
        e.i(f"v_mul_f32 v{x0}, v{x0}, {r}")
        e.i(f"v_mul_f32 v{x1}, v{x1}, {r}")
        e.i(f"v_cvt_pk_bf16_f32 v{8+4*rr+k}, v{x0}, v{x1}")
e.i(f"v_lshrrev_b32 v2, 3, {vLANE}")
e.i(f"v_lshlrev_b32 v2, 18, v2")
e.i(f"v_bfe_u32 v3, {vLANE}, 2, 1")
e.i(f"v_lshl_add_u32 v2, v3, 10, v2")
e.i(f"v_and_b32 v3, 3, {vLANE}")
e.i(f"v_lshl_add_u32 v2, v3, 8, v2")
e.i(f"s_lshr_b32 {T0}, {T1}, 4")
e.i(f"s_lshl_b32 {T0}, {T0}, 11")
e.i(f"s_and_b32 {T2}, {T1}, 15")
e.i(f"s_lshl_b32 {T2}, {T2}, 4")
e.i(f"s_add_u32 {T0}, {T0}, {T2}")
e.i(f"s_add_u32 {T0}, {T0}, {XN}")
e.vm(f"buffer_store_dwordx4 v[8:11], v2, {WS}, {T0} offen sc1", "xn")
e.vm(f"buffer_store_dwordx4 v[12:15], v2, {WS}, {T0} offen offset:16 sc1", "xn")
stamp(1)

POOL = 64
MF = "v_mfma_f32_16x16x32_bf16"


def pool(h, f): return a(POOL + 16 * h + 4 * f, 4)


def tr_reads(half, vpair, imm_fn):
    out = []
    for cI in range(2):
        for ks in range(2):
            for u in range(2):
                d = POOL + 16 * half + 4 * (2 * cI + ks) + 2 * u
                out.append(f"ds_read_b64_tr_b16 {a(d,2)}, v{vpair[cI]} offset:{imm_fn(ks,u)}")
    return out


def p1_tr(j, g, half):
    part, aa = g // 4, g % 4
    return tr_reads(half, vTR[j % 3], lambda ks, u: part * 16384 + ks * 8192 + u * 1024 + aa * 256)


def c_reads(j):
    return [f"ds_read_b128 {a(32*(j&1) + 8*rt + 4*ks, 4)}, v{vCR[ks]} offset:{(j&1)*32768 + rt*2048}" for rt in range(4) for ks in range(2)]


def p1_mfmas(j):
    mf = []
    for g in range(8):
        part, aa = g // 4, g % 4
        for rt in range(4):
            for cI in range(2):
                dt = 2 * aa + cI
                for ks in range(2):
                    cf = a(32 * (j & 1) + 8 * rt + 4 * ks, 4)
                    wf = pool(g & 1, 2 * cI + ks)
                    if part == 0:
                        d = v(32 * rt + 4 * dt, 4)
                        A_, B_ = wf, cf
                    else:
                        d = (v if rt < 2 else a)(128 + 8 * dt + 4 * (rt & 1), 4)
                        A_, B_ = cf, wf
                    cc = "0" if (j == 0 and ks == 0) else d
                    mf.append(f"{MF} {d}, {A_}, {B_}, {cc}")
    return mf


P2SLOT = [2, 0, 1]
XBUF = [192, 224, 128, 160]


def p2_w_dma(j):
    k = P2SLOT[j % 3]
    out = [(4, f"s_add_u32 m0, {sW4K}, {WSLOT[k]}"), (4, f"s_add_u32 {sTA_}, {sWB}, {j*524288}")]
    for q in range(4):
        out.append((8, VM(f"buffer_load_dwordx4 v{vOW[q]}, {SWQ}, {sTA_} offen offset:{q*1024} lds", f"q{j}")))
    out.append((8, lambda em: (em.i(f"s_lshr_b32 {T2}, {sW4K}, 1"), em.i(f"s_add_u32 m0, {T2}, {WSLOT[k] + 16384}"))))
    out.append((4, f"s_add_u32 {sTB_}, {sW1B}, {j*64*3584}"))
    for q in range(2):
        out.append((8, VM(f"buffer_load_dwordx4 v{vOM[q]}, {SW1}, {sTB_} offen offset:{q*1024} lds", f"q{j}")))
    return out


def p2_x_load(j):
    out = []
    for half in range(2):
        st = sTA_ if half == 0 else sTB_
        out.append((4, f"s_add_u32 {st}, {sXB}, {j*262144 + half*4096}"))
        for q in range(4):
            out.append((8, VM(f"buffer_load_dwordx4 {a(XBUF[j%4] + 16*half + 4*q, 4)}, {vL16}, {WS}, {st} offen offset:{q*1024} sc1", f"x{j}")))
    return out


def p2_scalars():
    e.i(f"s_and_b32 {T0}, {sW}, 1")
    e.i(f"s_lshl_b32 {T1}, {sI}, 1")
    e.i(f"s_add_u32 {T0}, {T0}, {T1}")
    e.i(f"s_sub_u32 {sBLKB}, 31, {T0}")
    e.i(f"s_cmp_lt_u32 {sW}, 2")
    e.i(f"s_cselect_b32 s73, {sBLKB}, {T0}")
    e.i(f"s_lshl_b32 {sXB}, s73, 13")
    e.i(f"s_add_u32 {sXB}, {sXB}, {XN}")
    e.i(f"s_lshl_b32 {sW1B}, {sH}, 7")
    e.i(f"s_mul_i32 {T0}, {sW}, {16*3584}")
    e.i(f"s_add_u32 {sW1B}, {sW1B}, {T0}")


def bias_load():
    out = [(8, lambda em: (em.i(f"v_lshrrev_b32 v248, 4, {vLANE}"), em.i(f"v_lshlrev_b32 v248, 3, v248"))),
           (4, f"s_lshl_b32 {T2}, {sH}, 7")]
    for ct in range(4):
        out.append((8, VM(f"buffer_load_dwordx2 v[{232+2*ct}:{233+2*ct}], v248, {SB1}, {T2} offen offset:{32*ct}", "b1")))
    return out


def bias_unpack():
    e.wvm("b1")
    for ct in range(4):
        for k in range(2):
            e.i(f"v_lshlrev_b32 v{vBIAS+4*ct+2*k}, 16, v{232+2*ct+k}")
            e.i(f"v_and_b32 v{vBIAS+4*ct+2*k+1}, 0xffff0000, v{232+2*ct+k}")


p2_scalars()
e.wvm("c0", "w0")
e.i("s_barrier")
for t in c_reads(0) + ["s_waitcnt lgkmcnt(4)"] + p1_tr(0, 0, 0):
    e.i(t)
stamp(2)
for j in range(8):
    mf = p1_mfmas(j)
    items, pre = [], {}
    for g in range(8):
        pre[16 * g] = [(4, "s_waitcnt lgkmcnt(0)")]
        if g < 7:
            rd = p1_tr(j, g + 1, (g + 1) & 1)
        elif j < 7:
            rd = p1_tr(j + 1, 0, 0)
        else:
            rd = []
        for k, t in enumerate(rd):
            items.append(Item(16 * g + k, 4, t, "tr", dl=16 * g + 12))
    if j < 7:
        if j == 0:
            pre[16].append((4, WVM("c1")))
        for k, t in enumerate(c_reads(j + 1)):
            items.append(Item(16 + 8 + 4 * k, 4, t, "cr", dl=62))
    tags = []
    if j < 7:
        tags.append(f"w{j+1}")
    if j < 6:
        tags.append(f"c{j+2}")
    if tags:
        pre[112] = [(4, "s_waitcnt lgkmcnt(0)"), (4, WVM(*tags)), (4, "s_barrier")]
    else:
        pre[112] = [(4, "s_waitcnt lgkmcnt(0)"), (4, "s_barrier")]
    if j == 0:
        items += spread(c_dma(2), 0, 60, "dma")
    elif j + 2 < 8:
        items += spread(w_dma(j + 2, [SWK, SWV], WSLOT[(j + 2) % 3], f"w{j+2}"), 0, 60, "dma")
    if j + 3 < 8:
        items += spread(c_dma(j + 3), 64, 108, "dma")
    if j == 2:
        assert e.covered("zero") and e.covered("xn")
        def arrive(em):
            em.i(f"v_cmp_eq_u32 vcc, 0, {vLANE}")
            em.i(f"v_mov_b32 v248, {HUGE}")
            em.i(f"s_cmp_eq_u32 {sW}, 0")
            em.i(f"s_cselect_b32 {T2}, 0, {HUGE}")
            em.i(f"v_cndmask_b32 v248, v248, 0, vcc")
            em.vm(f"buffer_atomic_add {vONE}, v248, {SDBG}, {T2} offen sc1")
        items.append(Item(100, 24, arrive, "misc"))
    if j == 5:
        def ld(em):
            em.i(f"v_mov_b32 {vFOFF}, 0")
            em.vm(f"buffer_load_dword {vFLAG}, {vFOFF}, {SDBG}, 0 offen sc1", "init")
        items.append(Item(64, 12, ld, "dma"))
        items += spread(bias_load(), 70, 100, "dma")
    if j == 6:
        pre[0].append((12, lambda em: flag_check("init", 256, SDBG)))
        items += spread(p2_w_dma(0) + p2_x_load(0), 0, 100, "dma")
    if j == 7:
        items += spread(p2_w_dma(1) + p2_x_load(1), 0, 100, "dma")
        items += spread(p2_w_dma(2), 113, 126, "dma")
    pack(e, mf, items, pre, name=f"p1s{j}", verbose=opt["verbose"])
stamp(3)

e.i(f"s_lshl_b32 {sKVH}, {sH}, 20")
e.i(f"s_add_u32 {sKVH}, {sKVH}, {KV}")
e.i(f"s_lshl_b32 {T0}, {sI}, 17")
e.i(f"s_lshl_b32 {T1}, {sW}, 15")
e.i(f"s_add_u32 {T0}, {T0}, {T1}")
e.i(f"s_add_u32 {T0}, {T0}, {sKVH}")
e.i(f"s_add_u32 {sKVH}, {sKVH}, {sW4K}")
e.wvm("x1")


def cvt4(dst, src):
    for k in range(4):
        e.i(f"v_cvt_pk_bf16_f32 v{dst+k}, v{src+2*k}, v{src+2*k+1}")


for rt in range(4):
    e.i(f"s_add_u32 {T1}, {T0}, {(rt>>1)*16384 + (rt&1)*4096}")
    for aa in range(4):
        b = 32 * rt + 8 * aa
        cvt4(b, b)
        e.vm(f"buffer_store_dwordx4 {v(b,4)}, {vL16}, {WS}, {T1} offen offset:{aa*1024} sc1", "kv")
for jj in range(2):
    for dt in range(8):
        if dt % 4 == 0:
            e.i(f"s_add_u32 {T1}, {T0}, {jj*16384 + 8192 + (dt//4)*4096}")
        if jj == 0:
            b = 128 + 8 * dt
        else:
            b = 8 * dt
            for k in range(8):
                e.i(f"v_accvgpr_read_b32 v{b+k}, a{128+8*dt+k}")
        cvt4(b, b)
        e.vm(f"buffer_store_dwordx4 {v(b,4)}, {vL16}, {WS}, {T1} offen offset:{(dt%4)*1024} sc1", "kv")
now(p2_x_load(2))
now(p2_x_load(3))
bias_unpack()
stamp(4)
if opt["stop"] == 1:
    finish()

def p2_tr(j, g, half):
    k = P2SLOT[j % 3]
    if g < 4:
        return tr_reads(half, vTR[k], lambda ks, u: ks * 8192 + u * 1024 + g * 256)
    return tr_reads(half, vTM[k], lambda ks, u: ks * 4096 + u * 512 + (g - 4) * 256)


def p2_mfmas(j):
    mf = []
    for g in range(6):
        for rt in range(4):
            for cI in range(2):
                for ks in range(2):
                    xf = a(XBUF[j % 4] + 8 * rt + 4 * ks, 4)
                    wf = pool(g & 1, 2 * cI + ks)
                    if g < 4:
                        d = v(32 * rt + 4 * (2 * g + cI), 4)
                        c0 = "0"
                    else:
                        ct = 2 * (g - 4) + cI
                        d = v(128 + 16 * rt + 4 * ct, 4)
                        c0 = v(vBIAS + 4 * ct, 4)
                    mf.append(f"{MF} {d}, {wf}, {xf}, {c0 if (j == 0 and ks == 0) else d}")
    return mf


def p3_scalars():
    e.i(f"s_mov_b32 {sBLK0}, s73")
    e.i(f"s_lshl_b32 {sLO}, {sI}, 2")
    e.i(f"s_add_u32 {sLO}, {sLO}, 2")
    e.i(f"s_lshl_b32 {sTA}, {sBLK0}, 1")
    e.i(f"s_add_u32 {sTA}, {sTA}, 2")
    e.i(f"s_cmp_lt_u32 {sW}, 2")
    e.i(f"s_cselect_b32 {sTA}, 99, {sTA}")
    e.i(f"s_sub_u32 {sDEL}, {sW}, 1")
    e.i(f"s_max_i32 {sDEL}, {sDEL}, 0")


def t_set(ee):
    slot = (ee + 5) & 3
    def main(em):
        em.i(f"s_add_u32 m0, {sW4K}, {slot*32768}")
        em.i(f"s_sub_u32 {T0}, {ee+5}, {sDEL}")
        em.i(f"s_lshl_b32 {T1}, {T0}, 14")
        em.i(f"s_add_u32 {T1}, {T1}, {sKVH}")
        em.i(f"s_cmp_le_u32 {T0}, 32")
        em.i(f"s_cselect_b32 {sGM}, {T1}, {HUGE}")
    def tail(em):
        em.i(f"s_add_u32 m0, {sW4K}, {slot*32768 + 16384}")
        em.i(f"s_sub_u32 {T0}, {ee+5}, {sDEL}")
        em.i(f"s_sub_u32 {T1}, 65, {T0}")
        em.i(f"s_lshl_b32 {T1}, {T1}, 14")
        em.i(f"s_add_u32 {T1}, {T1}, {sKVH}")
        em.i(f"s_cmp_ge_i32 {T0}, {sLO}")
        em.i(f"s_cselect_b32 {sGT}, {T1}, {HUGE}")
    out = [(24, main)]
    for q in range(4):
        out.append((8, VM(f"buffer_load_dwordx4 {vL16}, {WS}, {sGM} offen offset:{q*1024} sc1 lds", f"T{ee+3}")))
    out.append((28, tail))
    for q in range(4):
        out.append((8, VM(f"buffer_load_dwordx4 {vL16}, {WS}, {sGT} offen offset:{q*1024} sc1 lds", f"T{ee+3}")))
    return out


e.wvm("q0", "x0")
e.i("s_barrier")
e.label("L_p2_start")
for t in p2_tr(0, 0, 0):
    e.i(t)
for j in range(8):
    mf = p2_mfmas(j)
    items, pre = [], {}
    for g in range(6):
        pre[16 * g] = [(4, "s_waitcnt lgkmcnt(0)")]
        if g < 5:
            rd = p2_tr(j, g + 1, (g + 1) & 1)
        elif j < 7:
            rd = p2_tr(j + 1, 0, 0)
        else:
            rd = []
        for k, t in enumerate(rd):
            items.append(Item(16 * g + k, 4, t, "tr", dl=16 * g + 12))
    if j < 7:
        pre[80] = [(4, "s_waitcnt lgkmcnt(0)"), (4, WVM(f"q{j+1}", f"x{j+1}")), (4, "s_barrier")]
    else:
        pre[80] = [(4, "s_waitcnt lgkmcnt(0)"), (4, "s_barrier")]
    lst = []
    if 1 <= j and j + 2 < 8:
        lst += p2_w_dma(j + 2)
    if 1 <= j and j + 3 < 8:
        lst += p2_x_load(j + 3)
    items += spread(lst, 0, 70, "dma")
    if j == 1:
        def sig(em):
            em.wvm("kv")
            em.i(f"s_lshl_b32 {T0}, {sH}, 7")
            em.i(f"s_lshl_b32 {T1}, {sI}, 4")
            em.i(f"s_add_u32 {T0}, {T0}, {T1}")
            em.i(f"s_lshl_b32 {T1}, {sW}, 2")
            em.i(f"s_add_u32 {T0}, {T0}, {T1}")
            flag_set(em, T0)
        items.append(Item(-1, 32, sig, "dma"))
    if j == 4:
        items.append(Item(72, 24, lambda em: flag_load(lambda: e.i(f"s_lshl_b32 {T0}, {sH}, 7"), 32, "fkv"), "dma"))
    if j == 6:
        pre[0].append((48, lambda em: (p3_scalars(), flag_check("fkv", 1))))
        items += spread(t_set(-5) + t_set(-4), 0, 78, "dma")
    if j == 7:
        items += spread(t_set(-3), 81, 95, "dma")
    pack(e, mf, items, pre, name=f"p2s{j}", verbose=opt["verbose"])
now(t_set(-2))
stamp(5)

QS = 1.4426950408889634 / (128 ** 0.5)
e.i(f"s_mov_b32 {T2}, {f32(QS)}")
e.i(f"s_mov_b32 {T3}, {f32(QS)}")
e.i(f"v_mov_b32 v232, {T2}")
e.i(f"s_and_b32 {T0}, {sW}, 1")
e.i(f"s_lshl_b32 {T0}, {T0}, 14")
e.i(f"s_add_u32 {T0}, {T0}, 131072")
vSTASH = 233
e.i(f"v_add_u32 v{vSTASH}, {T0}, {vL16}")
for qt in range(4):
    for aa in range(4):
        b = 32 * qt + 8 * aa
        for k in range(4):
            e.i(f"v_pk_mul_f32 {v(b+2*k,2)}, {v(b+2*k,2)}, v[232:233] op_sel_hi:[1,0]")
        cvt4(b, b)
        for k in range(4):
            e.i(f"v_accvgpr_write_b32 a{16*qt+4*aa+k}, v{b+k}")
e.i(f"s_cmp_ge_u32 {sW}, 2")
e.i("s_cbranch_scc1 L_nostash")
for qt in range(4):
    for aa in range(4):
        if qt == 3 and aa == 0:
            e.i("s_waitcnt lgkmcnt(8)")
        e.i(f"ds_write_b128 v{vSTASH}, {v(32*qt+8*aa,4)} offset:{(4*qt+aa)*1024}")
e.label("L_nostash")
e.i(f"s_lshl_b32 {T0}, {sH}, 5")
e.i(f"s_add_u32 {T0}, {T0}, {sBLK0}")
e.i(f"s_lshl_b32 {T0}, {T0}, 13")
e.i(f"s_add_u32 {T0}, {T0}, {HH}")
e.i(f"s_add_u32 {T1}, {T0}, 4096")
for rt in range(4):
    for aa in range(2):
        b = 128 + 16 * rt + 8 * aa
        for k in range(8):
            e.i(f"v_max_f32 v{b+k}, 0, v{b+k}")
        for k in range(4):
            e.i(f"v_pk_mul_f32 {v(b+2*k,2)}, {v(b+2*k,2)}, {v(b+2*k,2)}")
        cvt4(b, b)
        e.vm(f"buffer_store_dwordx4 {v(b,4)}, {vL16}, {WS}, {T0 if rt < 2 else T1} offen offset:{((rt&1)*2+aa)*1024} sc1", "h")
stamp(6)

O, S, P, CM = 0, 128, [160, 176], 192
vBK, vBVL, vBVH, vAK, vAVL, vAVH = 224, 225, 226, 227, 228, 229
vNEG, vSTQ = 230, 231
vT = 232
Q, L, ONES, BASE = 0, 96, 112, 116

e.i(f"v_mov_b32 v{vSTQ}, v{vSTASH}")
e.i("s_nop 0")
for k in range(64):
    e.i(f"v_pk_mov_b32 {v(O+2*k,2)}, 0, 0")
for k in range(16):
    e.i(f"v_accvgpr_write_b32 a{L+k}, 0")
e.i(f"v_mov_b32 v{vT}, 0x3f803f80")
e.i(f"v_mov_b32 v{vNEG}, {f32(-1e30)}")
for k in range(4):
    e.i(f"v_accvgpr_write_b32 a{ONES+k}, v{vT}")
e.i(f"v_subrev_u32 v{vBK}, {sW4K}, {vL16}")
e.i(f"v_mov_b32 v{vBVL}, v{vBK}")
e.i(f"v_mov_b32 v{vBVH}, v{vBK}")
e.i(f"v_mov_b32 v{vAK}, {vL16}")
e.i(f"v_lshrrev_b32 v{vT}, 4, {vLANE}")
e.i(f"v_lshlrev_b32 v{vT}, 2, v{vT}")
e.i(f"v_and_b32 v{vT+1}, 15, {vLANE}")
e.i(f"v_sub_u32 v{vT}, v{vT+1}, v{vT}")
for r in range(4):
    e.i(f"v_cmp_le_i32 {sTRI[r]}, {r}, v{vT}")
e.i(f"s_mov_b64 {sCM}, 0")
e.i(f"s_cmp_lt_u32 {sW}, 2")
e.i("s_cbranch_scc1 L_evx")
e.i(f"s_sub_u32 {T0}, {sTA}, 2")
e.i(f"s_bfm_b64 {sCM}, 5, {T0}")
e.i("s_branch L_evy")
e.label("L_evx")
e.i(f"s_cmp_eq_u32 {sBLKB}, 16")
e.i("s_cbranch_scc0 L_evy")
e.i(f"s_bitset1_b64 {sCM}, 32")
e.label("L_evy")
e.i(f"s_bitset1_b64 {sCM}, 0")
e.i(f"s_mov_b64 {sEV}, {sCM}")
e.i(f"s_bitset1_b64 {sEV}, 6")
e.i(f"s_add_u32 {T0}, {sDEL}, 30")
e.i(f"s_bitset1_b64 {sEV}, {T0}")
e.i(f"s_add_u32 {T0}, {sLO}, {sDEL}")
e.i(f"s_sub_u32 {T0}, {T0}, 3")
e.i(f"s_max_i32 {T0}, {T0}, 0")
e.i(f"s_bitset1_b64 {sEV}, {T0}")
e.i(f"s_mov_b64 {sFAIL}, 0")
e.i(f"s_cmp_lg_u32 {sREDO}, 0")
e.i("s_cbranch_scc1 L_maxpass")
for k in range(8):
    e.i(f"v_accvgpr_write_b32 a{BASE+k}, 0")
e.label("L_maxret")
e.i(f"s_mov_b32 {sN2}, 0")
e.i(f"s_call_b64 {sRET}, L_handler")
e.i(f"s_mov_b32 {sN2}, 1")
e.i(f"s_sub_u32 {T0}, 4, {sDEL}")
e.i(f"s_lshl_b32 {sGM}, {T0}, 14")
e.i(f"s_add_u32 {sGM}, {sGM}, {sKVH}")
e.i(f"s_mov_b32 {sDM}, 16384")
e.i(f"s_sub_u32 {T1}, 65, {T0}")
e.i(f"s_lshl_b32 {T1}, {T1}, 14")
e.i(f"s_add_u32 {T1}, {T1}, {sKVH}")
e.i(f"s_cmp_ge_u32 {T0}, {sLO}")
e.i(f"s_cselect_b32 {sGT}, {T1}, {HUGE}")
e.i(f"s_cselect_b32 {sDT}, -16384, 0")


def Sreg(kvt, qt): return S + 16 * kvt + 4 * qt


def qk_mf(kvt):
    mf = []
    for qt in range(4):
        d = v(Sreg(kvt, qt), 4)
        for ds in range(4):
            mf.append(f"{MF} {d}, {pool(kvt, ds)}, {a(Q+16*qt+4*ds,4)}, {v(CM+16*kvt+4*qt,4) if ds == 0 else d}")
    return mf


def pv_mf(Pc):
    mf = []
    for pg in range(2):
        for f in range(4):
            for qt in range(4):
                d = v(O + 32 * qt + 4 * (4 * pg + f), 4)
                mf.append(f"{MF} {d}, {pool(pg, f)}, {v(Pc+4*qt,4)}, {d}")
    for qt in range(4):
        d = a(L + 4 * qt, 4)
        mf.append(f"{MF} {d}, {a(ONES,4)}, {v(Pc+4*qt,4)}, {d}")
    return mf


def sm_seq(kvt, Pd):
    seq, pend = [], None
    for qt in range(4):
        for p in range(2):
            r = Sreg(kvt, qt) + 2 * p
            seq.append((8, f"v_exp_f32 v{r}, v{r}"))
            seq.append((8, f"v_exp_f32 v{r+1}, v{r+1}"))
            if pend:
                seq.append(pend)
            pend = (4, f"v_cvt_pk_bf16_f32 v{Pd+4*qt+2*kvt+p}, v{r}, v{r+1}")
    seq.append(pend)
    return seq


SPLIT = 13


def rd(half, va, imm):
    return [f"ds_read_b128 {pool(half, f)}, v{va} offset:{imm + f*1024}" for f in range(4)]


def spread_cost(seq, lo, hi, stream, dl=None):
    tot = sum(c for c, _ in seq)
    acc, out = 0, []
    for c, t in seq:
        out.append(Item(lo + (hi - lo) * acc / tot, c, t, stream, dl))
        acc += c
    return out


def dma_items(old, plain, p0=33):
    it = [Item(p0 - 1, 4, f"s_mov_b32 m0, {old}", "dma")]
    mk = (lambda t: t) if plain else (lambda t: VM(t, "Tn"))
    for q in range(4):
        it.append(Item(p0 + 4 * q, 8, mk(f"buffer_load_dwordx4 {vL16}, {WS}, {sGM} offen offset:{q*1024} sc1 lds"), "dma"))
    it.append(Item(p0 + 14, 4, f"s_add_u32 m0, m0, 16384", "dma"))
    it.append(Item(p0 + 14, 4, f"s_add_u32 {sGM}, {sGM}, {sDM}", "dma"))
    for q in range(4):
        it.append(Item(p0 + 16 + 4 * q, 8, mk(f"buffer_load_dwordx4 {vL16}, {WS}, {sGT} offen offset:{q*1024} sc1 lds"), "dma"))
    it.append(Item(p0 + 30, 4, f"s_add_u32 {sGT}, {sGT}, {sDT}", "dma"))
    return it


def event_point(wait):
    lab, ret = newlab("ev"), newlab("evret")
    st = Em()
    st.label(lab)
    st.i(f"s_call_b64 {sRET}, L_handler")
    st.i(f"s_branch {ret}")
    stubs.append(st)
    return [(4, f"s_bitcmp1_b64 {sEV}, {sN2}"), (4, wait), (4, f"s_cbranch_scc1 {lab}"), (0, lambda em: em.label(ret)), (4, "s_barrier")]


e.i(f"s_mov_b32 {sMB}, {sW4K}")
e.i("s_waitcnt lgkmcnt(0)")
e.wvm("T-2")
e.i("s_barrier")
for t in rd(0, vAK, 0):
    e.i(t)
e.i(f"s_add_u32 {sMA}, {sMB}, 32768")
e.i(f"v_add_u32 v{vAVH}, {sMA}, v{vBVH}")
items = [Item(k, 4, t, "rd") for k, t in enumerate(rd(1, vAK, 4096))]
seq0 = sm_seq(0, P[0])
items += spread_cost(seq0[:14], 16, 31, "sm")
pack(e, qk_mf(0) + qk_mf(1), items, {0: [(4, "s_waitcnt lgkmcnt(0)")], 16: [(4, "s_waitcnt lgkmcnt(0)")]}, name="p3pro")
for _, o in event_point(WVM("T-1")):
    e.do(o)
e.i(f"v_add_u32 v{vAK}, {sMA}, v{vBK}")
e.i(f"v_add_u32 v{vAVL}, {sMA}, v{vBVL}")
for t in rd(0, vAK, 0):
    e.i(t)
for it in dma_items(sMB, False):
    e.do(it.obj)
    if "m0" in str(it.obj):
        e.i("s_nop 0")
for _, t in seq0[14:] + sm_seq(1, P[0])[:SPLIT]:
    e.i(t)
e.i(f"s_mov_b32 {sN2}, 2")
assert e.vm_n - e.vm_tag["T0"] >= 16 and e.vm_n - e.vm_tag["T1"] >= 8
stamp(7)


def step(n):
    Pc, Pn = P[n & 1], P[(n + 1) & 1]
    old, new = (sMA, sMB) if n % 2 == 0 else (sMB, sMA)
    mf = qk_mf(0) + qk_mf(1) + pv_mf(Pc)
    items = []
    for g, (half, va, imm) in enumerate([(1, vAK, 4096), (0, vAVL, 8192), (1, vAVH, 12288), (0, vAK, 0)]):
        for k, t in enumerate(rd(half, va, imm)):
            items.append(Item(16 * g + 1 + 2 * k, 4, t, "rd", dl=16 * g + 11))
    items += spread_cost(sm_seq(1, Pc)[SPLIT:], 0, 13, "sm1", dl=14)
    items += spread_cost(sm_seq(0, Pn), 16, 49, "sm0")
    items += spread_cost(sm_seq(1, Pn)[:SPLIT], 50, 67, "sm0")
    items.append(Item(12, 4, f"s_add_u32 {new}, {old}, 32768", "ad"))
    items.append(Item(13, 4, f"s_and_b32 {new}, {new}, 0x1ffff", "ad"))
    items.append(Item(14, 4, f"v_add_u32 v{vAVH}, {new}, v{vBVH}", "ad", dl=30))
    items.append(Item(40, 4, f"v_add_u32 v{vAK}, {new}, v{vBK}", "ad", dl=47))
    items.append(Item(44, 4, f"v_add_u32 v{vAVL}, {new}, v{vBVL}", "ad"))
    items.append(Item(60, 4, f"s_add_u32 {sN2}, {sN2}, 1", "ad"))
    items += dma_items(old, True)
    pre = {0: [(4, "s_waitcnt lgkmcnt(0)")], 16: [(4, "s_waitcnt lgkmcnt(0)")], 48: [(4, "s_waitcnt lgkmcnt(0)")],
           32: event_point("s_waitcnt vmcnt(16) lgkmcnt(0)")}
    if n % 2 == 1:
        pre[68] = [(4, f"s_cmp_lt_u32 {sN2}, 34"), (4, "s_cbranch_scc1 L_att_loop")]
    pack(e, mf, items, pre, name=f"p3step{n}", verbose=opt["verbose"])


e.i(".p2align 6")
e.label("L_att_loop")
loop_a = len(e.lines)
step(0)
step(1)
loop_b = len(e.lines)
e.i("s_waitcnt lgkmcnt(0)")
for t in rd(0, vAVL, 8192):
    e.i(t)
e.i(f"s_add_u32 {sMB}, {sMA}, 32768")
e.i(f"s_and_b32 {sMB}, {sMB}, 0x1ffff")
e.i(f"v_add_u32 v{vAVH}, {sMB}, v{vBVH}")
for _, t in sm_seq(1, P[0])[SPLIT:-1]:
    e.i(t)
e.i("s_nop 0")
e.i(sm_seq(1, P[0])[-1][1])
for _, o in event_point("s_waitcnt vmcnt(0) lgkmcnt(0)"):
    e.do(o)
e.vm_done = e.vm_n
items = [Item(1 + 2 * k, 4, t, "rd") for k, t in enumerate(rd(1, vAVH, 12288))]
pack(e, pv_mf(P[0]), items, {16: [(4, "s_waitcnt lgkmcnt(0)")]}, name="p3fin")
stamp(8)

LHI, LLO = f32(2.0 ** 60), f32(2.0 ** -60)
e.i(f"s_lshl_b32 {T0}, {sW}, 14")
e.i(f"v_add_u32 v{vT}, {T0}, {vL16}")
e.i(f"s_xor_b32 {T0}, {T0}, 32768")
e.i(f"v_add_u32 v{vT+1}, {T0}, {vL16}")
e.i(f"s_lshl_b32 {T0}, {sW}, 10")
e.i(f"s_add_u32 {T0}, {T0}, 98304")
e.i(f"v_add_u32 v{vT+2}, {T0}, {vL16}")
e.i(f"s_xor_b32 {T0}, {T0}, 2048")
e.i(f"v_add_u32 v{vT+3}, {T0}, {vL16}")
e.i(f"v_mov_b32 v{vT+4}, {98304 + 8}")
e.i(f"s_mov_b32 {T1}, {LHI}")
e.i(f"s_mov_b32 {T2}, {LLO}")
LR = S
for qt in range(4):
    e.i(f"v_accvgpr_read_b32 v{LR+qt}, a{L+4*qt}")
for qt in range(4):
    e.i(f"v_cmp_nge_f32 vcc, {T1}, v{LR+qt}")
    e.i("s_nop 0")
    e.i(f"s_or_b64 {sFAIL}, {sFAIL}, vcc")
e.i(f"s_lshl_b32 {T0}, {sH}, 6")
e.i(f"s_add_u32 {T0}, {T0}, {sBLKB}")
e.i(f"s_lshl_b32 {T0}, {T0}, 13")
e.i(f"s_add_u32 {T0}, {T0}, {CTX}")
e.i(f"s_cmp_ge_u32 {sW}, 2")
e.i("s_cbranch_scc1 L_fin_y")
RX = P[0]
vm_save = (e.vm_n, dict(e.vm_tag), e.vm_done)
for role in range(2):
    keep = [0, 1] if role == 0 else [2, 3]
    send = [2, 3] if role == 0 else [0, 1]
    if role == 1:
        e.label("L_fin_y")
        e.vm_n, e.vm_tag, e.vm_done = vm_save[0], dict(vm_save[1]), vm_save[2]
    else:
        for qt in range(4):
            e.i(f"v_cmp_nle_f32 vcc, {T2}, v{LR+qt}")
            e.i("s_nop 0")
            e.i(f"s_or_b64 {sFAIL}, {sFAIL}, vcc")
    for k, qt in enumerate(send):
        for dt in range(8):
            if k == 1 and dt == 4:
                e.i("s_waitcnt lgkmcnt(8)")
            e.i(f"ds_write_b128 v{vT}, {v(O+32*qt+4*dt,4)} offset:{(8*k+dt)*1024}")
    e.i(f"s_cmp_lg_u64 {sFAIL}, 0")
    e.i(f"s_cselect_b32 {T1}, 1, 0")
    if opt["forcefail"]:
        e.i(f"s_mov_b32 {T1}, 1")
    e.i(f"v_mov_b32 v{LR+4}, v{LR+send[0]}")
    e.i(f"v_mov_b32 v{LR+5}, v{LR+send[1]}")
    e.i(f"v_mov_b32 v{LR+6}, {T1}")
    e.i(f"v_mov_b32 v{LR+7}, 0")
    e.i(f"ds_write_b128 v{vT+2}, {v(LR+4,4)}")
    e.i("s_waitcnt lgkmcnt(0)")
    e.i("s_barrier")
    for w in range(4):
        e.i(f"ds_read_b32 v{LR+8+w}, v{vT+4} offset:{w*1024}")
    e.i(f"ds_read_b128 {v(LR+12,4)}, v{vT+3}")
    for k in range(10):
        e.i(f"ds_read_b128 {v(RX+4*k,4)}, v{vT+1} offset:{k*1024}")
    e.i("s_waitcnt lgkmcnt(10)")
    e.i(f"v_or_b32 v{LR+8}, v{LR+8}, v{LR+9}")
    e.i(f"v_or3_b32 v{LR+8}, v{LR+8}, v{LR+10}, v{LR+11}")
    for k in range(10, 15):
        e.i(f"ds_read_b128 {v(RX+4*k,4)}, v{vT+1} offset:{k*1024}")
    e.i(f"v_readfirstlane_b32 {T1}, v{LR+8}")
    e.i(f"v_add_f32 v{LR+16}, v{LR+keep[0]}, v{LR+12}")
    e.i(f"v_add_f32 v{LR+18}, v{LR+keep[1]}, v{LR+13}")
    e.i(f"s_andn2_b32 {T1}, {T1}, {sREDO}")
    e.i(f"s_cmp_lg_u32 {T1}, 0")
    e.i("s_cbranch_scc1 L_redo")
    e.i(f"v_rcp_f32 v{LR+16}, v{LR+16}")
    e.i(f"v_rcp_f32 v{LR+18}, v{LR+18}")
    e.i(f"s_add_u32 {T0}, {T0}, {keep[0]*2048}")
    e.i(f"s_add_u32 {T1}, {T0}, 262144")
    for k, qt in enumerate(keep):
        for aa in range(4):
            if k == 0 and aa == 0:
                e.i(f"s_waitcnt lgkmcnt(11)")
                e.i(f"ds_read_b128 {v(RX+60,4)}, v{vT+1} offset:{15*1024}")
            if k == 0 and aa == 2:
                e.i(f"s_waitcnt lgkmcnt(8)")
            if k == 1 and aa == 0:
                e.i("s_waitcnt lgkmcnt(0)")
            b = O + 32 * qt + 8 * aa
            for m in range(4):
                e.i(f"v_pk_add_f32 {v(b+2*m,2)}, {v(b+2*m,2)}, {v(RX+32*k+8*aa+2*m,2)}")
            for m in range(4):
                e.i(f"v_pk_mul_f32 {v(b+2*m,2)}, {v(b+2*m,2)}, {v(LR+16+2*k,2)} op_sel_hi:[1,0]")
            cvt4(b, b)
            e.vm(f"buffer_store_dwordx4 {v(b,4)}, {vL16}, {WS}, {T0 if aa < 2 else T1} offen offset:{(2*k+(aa&1))*1024} sc1", "ctx")
    if role == 0:
        e.i("s_branch L_fin_done")
e.label("L_fin_done")
stamp(9)
if opt["stop"] == 3:
    finish()

e.i(f"s_bfe_u32 {sQ}, {sB}, 0x20001")
e.i(f"s_bfe_u32 {sR}, {sB}, 0x30003")
e.i(f"s_and_b32 {T0}, {sB}, 1")
e.i(f"s_lshl_b32 {T0}, {T0}, 3")
e.i(f"s_add_u32 {sR}, {sR}, {T0}")
e.i(f"s_lshr_b32 {sCc}, {sB}, 6")
sW8 = "s82"
e.i(f"s_lshl_b32 {sW8}, {sW}, 13")
sBT, sCT, sHB, sW2B, sAB, sWOB, sIP, sU0, sU1 = "s70", "s71", "s72", "s73", "s74", "s75", "s76", "s77", "s78"
e.i(f"s_lshr_b32 {T0}, {sQ}, 1")
e.i(f"s_lshl_b32 {sBT}, {sR}, 1")
e.i(f"s_add_u32 {sBT}, {sBT}, {T0}")
e.i(f"s_and_b32 {T0}, {sQ}, 1")
e.i(f"s_lshl_b32 {sCT}, {sCc}, 1")
e.i(f"s_add_u32 {sCT}, {sCT}, {T0}")
e.i(f"s_sub_u32 {T0}, 15, {sR}")
e.i(f"s_min_u32 {sIP}, {T0}, {sR}")
e.i(f"s_mul_i32 {T0}, {sW}, {7*32}")
e.i(f"s_add_u32 {T0}, {T0}, {sBT}")
e.i(f"s_lshl_b32 {sHB}, {T0}, 13")
e.i(f"s_add_u32 {sHB}, {sHB}, {HH}")
e.i(f"s_mul_i32 {sW2B}, {sW}, {7*65536}")
e.i(f"s_lshl_b32 {T0}, {sCT}, 7")
e.i(f"s_add_u32 {sW2B}, {sW2B}, {T0}")
e.i(f"s_lshl_b32 {sAB}, {sQ}, 22")
e.i(f"s_lshl_b32 {T0}, {sR}, 14")
e.i(f"s_add_u32 {sAB}, {sAB}, {T0}")
e.i(f"s_add_u32 {sAB}, {sAB}, {sW4K}")
e.i(f"s_add_u32 {sAB}, {sAB}, {CTX}")
e.i(f"s_lshl_b32 {sWOB}, {sQ}, 20")
e.i(f"s_lshl_b32 {T0}, {sCc}, 8")
e.i(f"s_add_u32 {sWOB}, {sWOB}, {T0}")
e.i(f"s_lshl_b32 {T0}, {sW}, 14")
e.i(f"s_add_u32 {sWOB}, {sWOB}, {T0}")


def hflag_load():
    e.i(f"s_lshl_b32 {T0}, {sIP}, 9")
    e.i(f"s_add_u32 {T0}, {T0}, {F_H}")
    e.i(f"v_min_u32 {vFOFF}, 55, {vLANE}")
    e.i(f"v_lshlrev_b32 {vFOFF}, 3, {vFOFF}")
    e.i(f"v_add_u32 {vFOFF}, {T0}, {vFOFF}")
    e.vm(f"buffer_load_dwordx2 v[248:249], {vFOFF}, {WS}, 0 offen sc1", "fh")


def hflag_check():
    lab, ret = newlab("spin"), newlab("spinret")
    e.wvm("fh")
    e.i("v_and_b32 v248, v248, v249")
    e.i("v_cmp_ne_u32 vcc, 1, v248")
    e.i("s_nop 0")
    e.i(f"s_cbranch_vccnz {lab}")
    e.label(ret)
    st = Em()
    st.label(lab)
    st.i(f"s_mov_b32 {sSPIN}, 0")
    st.label(lab + "_l")
    st.i(f"s_add_u32 {sSPIN}, {sSPIN}, 1")
    st.i(f"s_cmp_gt_u32 {sSPIN}, 0x20000")
    st.i(f"s_cbranch_scc1 {ret}")
    st.i("s_sleep 2")
    st.i(f"buffer_load_dwordx2 v[248:249], {vFOFF}, {WS}, 0 offen sc1")
    st.i("s_waitcnt vmcnt(0)")
    st.i("v_and_b32 v248, v248, v249")
    st.i("v_cmp_ne_u32 vcc, 1, v248")
    st.i("s_nop 0")
    st.i(f"s_cbranch_vccnz {lab}_l")
    st.i(f"s_branch {ret}")
    stubs.append(st)


hflag_load()
vO2 = [200, 201, 202, 203]
vOO = [204, 205, 206, 207]
vT2 = [[208, 209], [210, 211]]
vTO = [212, 213]
vTOr = [[214 + 2 * k, 215 + 2 * k] for k in range(5)]
vAR = [224, 225, 226]
e.i(f"v_lshrrev_b32 v2, 5, {vLANE}")
e.i(f"v_and_b32 v3, 3, {vLANE}")
e.i(f"v_lshlrev_b32 v4, 1, v2")
e.i(f"v_xor_b32 v3, v3, v4")
e.i(f"v_lshlrev_b32 v2, 12, v2")
e.i(f"v_lshl_add_u32 v2, v3, 4, v2")
e.i(f"v_bfe_u32 v3, {vLANE}, 2, 2")
e.i(f"v_lshl_add_u32 v2, v3, 10, v2")
e.i(f"v_bfe_u32 v4, {vLANE}, 4, 1")
e.i(f"v_lshl_add_u32 v{vO2[0]}, v4, 6, v2")
for q in range(1, 4):
    e.i(f"v_add_u32 v{vO2[q]}, {q*7168}, v{vO2[0]}")
e.i(f"v_lshlrev_b32 v2, 10, v3")
e.i(f"v_lshrrev_b32 v4, 4, {vLANE}")
e.i(f"v_lshl_add_u32 v2, v4, 6, v2")
e.i(f"v_and_b32 v4, 3, {vLANE}")
e.i(f"v_lshl_add_u32 v{vOO[0]}, v4, 4, v2")
e.i(f"v_xor_b32 v4, 32, v{vOO[0]}")
e.i(f"v_add_u32 v{vOO[1]}, 3072, v4")
e.i(f"v_add_u32 v{vOO[2]}, 6144, v{vOO[0]}")
e.i(f"v_add_u32 v{vOO[3]}, 9216, v4")
emit_inner(2, 3, 9, 4, 5)
e.i(f"s_lshl_b32 {T0}, {sW}, 13")
for k in range(2):
    e.i(f"v_add_u32 v{vT2[0][k]}, {T0}, v{2+k}")
    e.i(f"v_add_u32 v{vT2[1][k]}, 65536, v{vT2[0][k]}")
emit_inner(2, 3, 10, 4, 5)
e.i(f"s_and_b32 {T0}, {sW}, 1")
e.i(f"s_lshl_b32 {T0}, {T0}, 9")
e.i(f"s_add_u32 {T0}, {T0}, 16384")
for k in range(5):
    e.i(f"s_add_u32 {T1}, {T0}, {k*32768}")
    e.i(f"v_add_u32 v{vTOr[k][0]}, {T1}, v2")
    e.i(f"v_add_u32 v{vTOr[k][1]}, {T1}, v3")
e.i(f"s_lshr_b32 {T0}, {sW}, 1")
e.i(f"s_lshl_b32 {T0}, {T0}, 13")
e.i(f"v_add_u32 v{vAR[0]}, {T0}, {vL16}")
e.i(f"v_add_u32 v{vAR[1]}, 65536, v{vAR[0]}")
e.i(f"v_add_u32 v{vAR[2]}, 131072, v{vAR[0]}")

TACC, SACC = 64, 0
TBUF = [128, 160, 192, 224]
ABUF = [0, 32, 96]
TREG = [0, 1, 2, 3, 3, 0, 1]


def t_w_dma(j):
    out = []
    for half in range(2):
        st = sU0 if half == 0 else sU1
        base = TREG[j] * 32768 + half * 4096
        out.append((4, f"s_add_u32 m0, {sW8}, {base}"))
        out.append((4, f"s_add_u32 {st}, {sW2B}, {j*65536 + half*32768}"))
        for q in range(4):
            out.append((8, VM(f"buffer_load_dwordx4 v{vO2[q]}, {SW2}, {st} offen offset:{q*1024} lds", f"tw{j}")))
    return out


def t_a_load(j):
    out = []
    for half in range(2):
        st = sU0 if half == 0 else sU1
        out.append((4, f"s_add_u32 {st}, {sHB}, {j*262144 + half*4096}"))
        for q in range(4):
            out.append((8, VM(f"buffer_load_dwordx4 {a(TBUF[j%4] + 16*half + 4*q, 4)}, {vL16}, {WS}, {st} offen offset:{q*1024} sc1", f"ta{j}")))
    return out


def t_tr(j, g, half):
    reg = TREG[j]
    return tr_reads(half, vT2[reg // 2], lambda ks, u: (reg % 2) * 32768 + ks * 4096 + u * 2048 + g * 256)


def g64_mfmas(acc, buf, first):
    mf = []
    for g in range(2):
        for rt in range(4):
            for cI in range(2):
                for ks in range(2):
                    d = v(acc + 16 * rt + 4 * (2 * g + cI), 4)
                    mf.append(f"{MF} {d}, {pool(g, 2*cI+ks)}, {a(buf+8*rt+4*ks,4)}, {'0' if first and ks == 0 else d}")
    return mf


UREG = [4, 0, 1, 2]


def u_act(j, reg, tag):
    out = [(4, f"s_add_u32 m0, {sW4K}, {reg*32768}"), (4, f"s_add_u32 {sU0}, {sAB}, {j*262144}")]
    for q in range(4):
        out.append((8, VM(f"buffer_load_dwordx4 {vL16}, {WS}, {sU0} offen offset:{q*1024} sc1 lds", tag)))
    return out


def u_w(j):
    out = [(4, f"s_add_u32 m0, {sW4K}, {UREG[j%4]*32768 + 16384}"), (4, f"s_add_u32 {sU1}, {sWOB}, {j*65536}")]
    for q in range(4):
        out.append((8, VM(f"buffer_load_dwordx4 v{vOO[q]}, {SWO}, {sU1} offen offset:{q*1024} lds", f"u{j}")))
    return out


def u_dma(j):
    return u_w(j) + (u_act(j + 1, UREG[j % 4], f"u{j}") if j + 1 < 16 else [])


def s_tr(j, g, half):
    return tr_reads(half, vTOr[UREG[j % 4]], lambda ks, u: ks * 8192 + u * 4096 + g * 256)


def s_act_reads(j, reg):
    return [f"ds_read_b128 {a(ABUF[j%3] + 4*k, 4)}, v{vAR[reg//2]} offset:{(reg%2)*32768 + k*1024}" for k in range(8)]


def t_stage(j, extra, nxt, pre0=None):
    mf = g64_mfmas(TACC, TBUF[j % 4], j == 0)
    items = [Item(k, 4, t, "tr", dl=12) for k, t in enumerate(t_tr(j, 1, 1))]
    pre = {0: [(4, "s_waitcnt lgkmcnt(0)")] + (pre0 or []), 16: [(4, "s_waitcnt lgkmcnt(0)")]}
    if nxt is not None:
        pre[16].append((4, WVM(f"tw{nxt}", f"ta{nxt}")))
        items += [Item(16 + k, 4, t, "tr", dl=28) for k, t in enumerate(t_tr(nxt, 0, 0))]
    items += spread(extra, 0, 30, "dma")
    pack(e, mf, items, pre, name=f"t{j}", verbose=opt["verbose"])


e.i("s_barrier")
now(t_w_dma(0))
now(t_w_dma(1))
hflag_check()
now(t_a_load(0))
now(t_a_load(1))
now(t_w_dma(2))
now(t_a_load(2))
e.wvm("ctx")
e.i(f"s_lshr_b32 {T0}, {sH}, 3")
e.i(f"s_lshl_b32 {T1}, {sI}, 2")
e.i(f"s_add_u32 {T0}, {T0}, {T1}")
e.i(f"s_lshl_b32 {T0}, {T0}, 7")
e.i(f"s_and_b32 {T1}, {sH}, 7")
e.i(f"s_lshl_b32 {T1}, {T1}, 4")
e.i(f"s_add_u32 {T0}, {T0}, {T1}")
e.i(f"s_lshl_b32 {T1}, {sW}, 2")
e.i(f"s_add_u32 {T0}, {T0}, {T1}")
e.i(f"s_add_u32 {T0}, {T0}, {F_CTX}")
flag_set(e, T0)
now(t_w_dma(3))
e.wvm("tw0", "ta0")
for t in t_tr(0, 0, 0):
    e.i(t)
stamp(10)


def cflag_off():
    e.i(f"s_lshl_b32 {T0}, {sIP}, 2")
    e.i(f"s_add_u32 {T0}, {T0}, {sQ}")
    e.i(f"s_lshl_b32 {T0}, {T0}, 7")
    e.i(f"s_add_u32 {T0}, {T0}, {F_CTX}")


t_stage(0, t_a_load(3) + u_w(0), 1)
t_stage(1, [], 2)
t_stage(2, [(28, lambda em: flag_load(cflag_off, 32, "fctx"))], 3)
def act0_load():
    def base(em):
        em.i(f"s_sub_u32 {sU0}, {sAB}, {sW4K}")
        em.i(f"s_lshr_b32 {T2}, {sW}, 1")
        em.i(f"s_lshl_b32 {T2}, {T2}, 13")
        em.i(f"s_add_u32 {sU0}, {sU0}, {T2}")
        em.i(f"s_add_u32 {sU1}, {sU0}, 4096")
    out = [(20, base)]
    for k in range(8):
        out.append((8, VM(f"buffer_load_dwordx4 {a(ABUF[0]+4*k,4)}, {vL16}, {WS}, {sU0 if k < 4 else sU1} offen offset:{(k%4)*1024} sc1", "a0")))
    return out


t_stage(3, act0_load() + u_act(1, 4, "u0") + u_dma(1) + u_dma(2) + u_dma(3), None,
        pre0=[(4, "s_barrier"), (12, lambda em: flag_check("fctx", 1))])
now(t_w_dma(4))
now(t_a_load(4))
e.wvm("a0", "u0")
e.i("s_barrier")
for t in s_tr(0, 0, 0) + s_act_reads(1, 4)[:4]:
    e.i(t)
stamp(11)
for j in range(16):
    mf = g64_mfmas(SACC, ABUF[j % 3], j == 0)
    items = [Item(k, 4, t, "tr", dl=12) for k, t in enumerate(s_tr(j, 1, 1))]
    pre = {0: [(4, "s_waitcnt lgkmcnt(0)")]}
    if j + 1 < 16:
        items += [Item(8 + k, 4, t, "ar", dl=14) for k, t in enumerate(s_act_reads(j + 1, UREG[j % 4])[4:])]
    if j < 15:
        pre[16] = [(4, "s_waitcnt lgkmcnt(0)"), (4, WVM(f"u{j+1}")), (4, "s_barrier")]
        items += [Item(16 + k, 4, t, "tr", dl=28) for k, t in enumerate(s_tr(j + 1, 0, 0))]
        if j + 2 < 16:
            items += [Item(24 + k, 4, t, "ar", dl=30) for k, t in enumerate(s_act_reads(j + 2, UREG[(j + 1) % 4])[:4])]
    else:
        pre[16] = [(4, "s_waitcnt lgkmcnt(0)"), (4, WVM("tw4", "ta4"))]
        items += [Item(16 + k, 4, t, "tr", dl=28) for k, t in enumerate(t_tr(4, 0, 0))]
    lst = []
    if j + 4 < 16:
        lst += u_dma(j + 4)
    if j == 13:
        lst += t_w_dma(5) + t_a_load(5)
    if j == 14:
        lst += t_w_dma(6) + t_a_load(6)
    items += spread(lst, 17, 31, "dma")
    pack(e, mf, items, pre, name=f"s{j}", verbose=opt["verbose"])
stamp(12)
e.i(f"s_lshl_b32 {T0}, {sR}, 2")
e.i(f"s_add_u32 {T0}, {T0}, {sCc}")
e.i(f"s_lshl_b32 {T1}, {T0}, 2")
e.i(f"s_add_u32 {T1}, {T1}, {sW}")
e.i(f"s_lshl_b32 {T1}, {T1}, 2")
e.i(f"s_add_u32 {T1}, {T1}, {sQ}")
e.i(f"s_lshl_b32 {T1}, {T1}, 14")
e.i(f"s_add_u32 {T1}, {T1}, {PART}")
for rt in range(4):
    if rt:
        e.i(f"s_add_u32 {T1}, {T1}, 4096")
    for ct in range(4):
        e.vm(f"buffer_store_dwordx4 {v(SACC+16*rt+4*ct,4)}, {vL16}, {WS}, {T1} offen offset:{ct*1024} sc1", "part")
sTILE = "s79"
e.i(f"s_lshl_b32 {sTILE}, {T0}, 7")
e.i(f"s_add_u32 {sTILE}, {sTILE}, {F_PART}")


def psig(em):
    em.wvm("part")
    em.i(f"s_lshl_b32 {T0}, {sQ}, 4")
    em.i(f"s_lshl_b32 {T1}, {sW}, 2")
    em.i(f"s_add_u32 {T0}, {T0}, {T1}")
    em.i(f"s_add_u32 {T0}, {T0}, {sTILE}")
    flag_set(em, T0)


vXO = 227


def fin_loads(em):
    em.i(f"v_and_b32 v{vXO}, 15, {vLANE}")
    em.i(f"v_lshlrev_b32 v{vXO}, 10, v{vXO}")
    em.i(f"v_lshrrev_b32 v228, 4, {vLANE}")
    em.i(f"v_lshlrev_b32 v228, 3, v228")
    em.i(f"v_add_u32 v{vXO}, v{vXO}, v228")
    em.i(f"s_lshl_b32 s80, {sBT}, 16")
    em.i(f"s_lshl_b32 {T0}, {sW}, 14")
    em.i(f"s_add_u32 s80, s80, {T0}")
    em.i(f"s_lshl_b32 s81, {sCT}, 7")
    em.i(f"s_add_u32 s80, s80, s81")
    for ct in range(4):
        em.vm(f"buffer_load_dwordx2 v[{232+2*ct}:{233+2*ct}], v{vXO}, {SX}, s80 offen offset:{32*ct}", "fx")
    for ct in range(4):
        em.vm(f"buffer_load_dwordx2 v[{240+2*ct}:{241+2*ct}], v228, {SB2}, s81 offen offset:{32*ct}", "fx")


def pflag_load(em):
    em.i(f"s_lshl_b32 {T0}, {sQ}, 2")
    em.i(f"s_add_u32 {T0}, {T0}, {sTILE}")
    em.i(f"v_min_u32 {vFOFF}, 3, {vLANE}")
    em.i(f"v_lshlrev_b32 {vFOFF}, 4, {vFOFF}")
    em.i(f"v_add_u32 {vFOFF}, {T0}, {vFOFF}")
    em.vm(f"buffer_load_dword {vFLAG}, {vFOFF}, {WS}, 0 offen sc1", "fpart")


t_stage(4, [(100, fin_loads)], 5)
t_stage(5, [(24, psig)], 6)
t_stage(6, [], None)
stamp(13)
pflag_load(e)
e.i(f"s_lshl_b32 {T0}, {sW}, 14")
e.i(f"s_add_u32 {T0}, {T0}, 65536")
e.i(f"v_add_u32 v229, {T0}, {vL16}")
e.i(f"s_lshl_b32 {T0}, {sW}, 12")
e.i(f"s_add_u32 {T0}, {T0}, 65536")
e.i(f"v_add_u32 v230, {T0}, {vL16}")
e.i("s_barrier")
for k in range(16):
    if k == 12:
        e.i("s_waitcnt lgkmcnt(8)")
    e.i(f"ds_write_b128 v229, {v(TACC+4*k,4)} offset:{k*1024}")
flag_check("fpart", 1)
e.i(f"s_sub_u32 {T1}, {sTILE}, {F_PART}")
e.i(f"s_lshl_b32 {T1}, {T1}, 11")
e.i(f"s_lshl_b32 {T0}, {sQ}, 16")
e.i(f"s_add_u32 {T1}, {T1}, {T0}")
e.i(f"s_add_u32 {T1}, {T1}, {sW4K}")
e.i(f"s_add_u32 {T1}, {T1}, {PART}")
for p in range(4):
    if p:
        e.i(f"s_add_u32 {T1}, {T1}, 16384")
    for ct in range(4):
        e.vm(f"buffer_load_dwordx4 {v(16*p+4*ct,4)}, {vL16}, {WS}, {T1} offen offset:{ct*1024} sc1", f"sp{p}")
e.i("s_waitcnt lgkmcnt(0)")
e.i("s_barrier")
for p in range(4):
    for ct in range(4):
        if p == 3 and ct == 2:
            e.i("s_waitcnt lgkmcnt(8)")
        e.i(f"ds_read_b128 {v(128+16*p+4*ct,4)}, v230 offset:{p*16384 + ct*1024}")
e.wvm("fx")
e.i("s_waitcnt lgkmcnt(0)")
for k in range(8):
    e.i(f"v_pk_add_f32 {v(128+2*k,2)}, {v(128+2*k,2)}, {v(144+2*k,2)}")
    e.i(f"v_pk_add_f32 {v(160+2*k,2)}, {v(160+2*k,2)}, {v(176+2*k,2)}")
for k in range(8):
    e.i(f"v_pk_add_f32 {v(128+2*k,2)}, {v(128+2*k,2)}, {v(160+2*k,2)}")
for k in range(8):
    e.i(f"v_lshlrev_b32 v{144+2*k}, 16, v{240+k}")
    e.i(f"v_and_b32 v{145+2*k}, 0xffff0000, v{240+k}")
    e.i(f"v_lshlrev_b32 v{160+2*k}, 16, v{232+k}")
    e.i(f"v_and_b32 v{161+2*k}, 0xffff0000, v{232+k}")
for k in range(8):
    e.i(f"v_pk_add_f32 {v(128+2*k,2)}, {v(128+2*k,2)}, {v(144+2*k,2)}")
for k in range(16):
    e.i(f"v_mul_f32 v{144+k}, {f32(-1.4426950408889634)}, v{128+k}")
for k in range(16):
    e.i(f"v_exp_f32 v{144+k}, v{144+k}")
for k in range(16):
    e.i(f"v_add_f32 v{144+k}, 1.0, v{144+k}")
for k in range(16):
    e.i(f"v_rcp_f32 v{144+k}, v{144+k}")
for k in range(8):
    e.i(f"v_pk_mul_f32 {v(128+2*k,2)}, {v(128+2*k,2)}, {v(144+2*k,2)}")
e.wvm("sp1")
for k in range(8):
    e.i(f"v_pk_add_f32 {v(2*k,2)}, {v(2*k,2)}, {v(16+2*k,2)}")
e.wvm("sp3")
for k in range(8):
    e.i(f"v_pk_add_f32 {v(32+2*k,2)}, {v(32+2*k,2)}, {v(48+2*k,2)}")
for k in range(8):
    e.i(f"v_pk_add_f32 {v(2*k,2)}, {v(2*k,2)}, {v(32+2*k,2)}")
for k in range(16):
    e.i(f"v_fma_f32 v{k}, v{k}, v{128+k}, v{160+k}")
for k in range(8):
    e.i(f"v_cvt_pk_bf16_f32 v{16+k}, v{2*k}, v{2*k+1}")
for ct in range(4):
    e.vm(f"buffer_store_dwordx2 {v(16+2*ct,2)}, v{vXO}, {SOUT}, s80 offen offset:{32*ct}")
stamp(14)
e.wvm_all()
e.label("L_exit")
e.i("s_endpgm")
main_end = len(e.lines)

h = Em()
h.label("L_handler")
h.i(f"s_bitcmp1_b64 {sCM}, {sN2}")
h.i("s_cbranch_scc0 L_h_nocm")
h.i(f"s_cmp_ge_u32 {sN2}, {sTA}")
h.i("s_cbranch_scc1 L_h_b")
h.i(f"s_lshl_b32 {T0}, {sBLK0}, 1")
h.i(f"s_sub_u32 {T0}, {sN2}, {T0}")
for qt in range(4):
    h.i(f"v_accvgpr_read_b32 v{vT+qt}, a{BASE+qt}")
h.i("s_branch L_h_t")
h.label("L_h_b")
h.i(f"s_lshl_b32 {T0}, {sBLKB}, 1")
h.i(f"s_add_u32 {T0}, {T0}, {sN2}")
h.i(f"s_sub_u32 {T0}, 65, {T0}")
for qt in range(4):
    h.i(f"v_accvgpr_read_b32 v{vT+qt}, a{BASE+4+qt}")
h.label("L_h_t")
h.i(f"s_call_b64 s[0:1], L_setcm")
h.label("L_h_nocm")
h.i(f"s_cmp_eq_u32 {sN2}, {sTA}")
h.i("s_cbranch_scc0 L_h_1")
for k in range(16):
    if k == 12:
        h.i("s_waitcnt lgkmcnt(4)")
    h.i(f"ds_read_b128 {a(Q+4*k,4)}, v{vSTQ} offset:{k*1024}")
h.i("s_waitcnt lgkmcnt(4)")
h.i(f"v_add_u32 v{vBK}, 16384, v{vBK}")
h.label("L_h_1")
h.i(f"s_add_u32 {T0}, {sTA}, 1")
h.i(f"s_cmp_eq_u32 {sN2}, {T0}")
h.i("s_cbranch_scc0 L_h_2")
h.i(f"v_add_u32 v{vBVL}, 16384, v{vBVL}")
h.i(f"v_add_u32 v{vBVH}, 16384, v{vBVH}")
h.label("L_h_2")
h.i(f"s_add_u32 {T0}, {sTA}, 2")
h.i(f"s_cmp_eq_u32 {sN2}, {T0}")
h.i("s_cbranch_scc0 L_h_3")
h.i(f"s_mov_b32 {T1}, {LHI}")
h.i(f"s_mov_b32 {T2}, {LLO}")
for qt in range(4):
    h.i(f"v_accvgpr_read_b32 v{vT+2*qt}, a{L+4*qt}")
for qt in range(4):
    h.i(f"v_cmp_nge_f32 vcc, {T1}, v{vT+2*qt}")
    h.i("s_nop 0")
    h.i(f"s_or_b64 {sFAIL}, {sFAIL}, vcc")
    h.i(f"v_cmp_nle_f32 vcc, {T2}, v{vT+2*qt}")
    h.i("s_nop 0")
    h.i(f"s_or_b64 {sFAIL}, {sFAIL}, vcc")
for qt in range(4):
    h.i(f"v_rcp_f32 v{vT+2*qt}, v{vT+2*qt}")
for k in range(16):
    h.i(f"v_accvgpr_write_b32 a{L+k}, 0")
h.i(f"s_lshl_b32 {T0}, {sH}, 6")
h.i(f"s_add_u32 {T0}, {T0}, {sBLK0}")
h.i(f"s_lshl_b32 {T0}, {T0}, 13")
h.i(f"s_add_u32 {T0}, {T0}, {CTX}")
h.i(f"s_add_u32 {T1}, {T0}, 262144")
prev = None
for qt in range(4):
    if qt == 2:
        h.i(f"s_add_u32 {T0}, {T0}, 4096")
        h.i(f"s_add_u32 {T1}, {T1}, 4096")
    for aa in range(4):
        b = O + 32 * qt + 8 * aa
        for m in range(4):
            h.i(f"v_pk_mul_f32 {v(b+2*m,2)}, {v(b+2*m,2)}, {v(vT+2*qt,2)} op_sel_hi:[1,0]")
        for k in range(4):
            h.i(f"v_cvt_pk_bf16_f32 v{b+k}, v{b+2*k}, v{b+2*k+1}")
        h.i(f"buffer_store_dwordx4 {v(b,4)}, {vL16}, {WS}, {T0 if aa < 2 else T1} offen offset:{(2*(qt&1)+(aa&1))*1024} sc1")
        if prev is not None:
            for m in range(4):
                h.i(f"v_pk_mov_b32 {v(prev+2*m,2)}, 0, 0")
        prev = b
h.i("s_nop 1")
for m in range(4):
    h.i(f"v_pk_mov_b32 {v(prev+2*m,2)}, 0, 0")
h.label("L_h_3")
h.i(f"s_add_u32 {T0}, {sN2}, 3")
h.i(f"s_sub_u32 {T0}, {T0}, {sDEL}")
h.i(f"s_cmp_eq_u32 {T0}, {sLO}")
h.i("s_cbranch_scc0 L_h_4")
h.i(f"s_sub_u32 {T1}, 65, {T0}")
h.i(f"s_lshl_b32 {T1}, {T1}, 14")
h.i(f"s_add_u32 {sGT}, {T1}, {sKVH}")
h.i(f"s_mov_b32 {sDT}, -16384")
h.label("L_h_4")
h.i(f"s_cmp_eq_u32 {T0}, 33")
h.i("s_cbranch_scc0 L_h_5")
h.i(f"s_mov_b32 {sGM}, {HUGE}")
h.i(f"s_mov_b32 {sGT}, {HUGE}")
h.i(f"s_mov_b32 {sDM}, 0")
h.i(f"s_mov_b32 {sDT}, 0")
h.label("L_h_5")
h.i(f"s_cmp_eq_u32 {sN2}, 6")
h.i("s_cbranch_scc0 L_h_6")
h.i(f"s_lshl_b32 {T0}, {sI}, 9")
h.i(f"s_lshl_b32 {T1}, {sH}, 4")
h.i(f"s_add_u32 {T0}, {T0}, {T1}")
h.i(f"s_lshl_b32 {T1}, {sW}, 2")
h.i(f"s_add_u32 {T0}, {T0}, {T1}")
h.i(f"s_add_u32 {T0}, {T0}, {F_H}")
flag_set(h, T0, tmp=f"v{vT}")
h.label("L_h_6")
h.i("s_nop 1")
h.i(f"s_setpc_b64 {sRET}")

h.label("L_setcm")
h.i("s_nop 2")
h.i(f"s_cmp_eq_u32 {T0}, 0")
h.i("s_cbranch_scc1 L_cm_d1")
h.i(f"s_cmp_eq_u32 {T0}, 1")
h.i("s_cbranch_scc1 L_cm_d2")
for typ, lab in ((0, None), (1, "L_cm_d1"), (2, "L_cm_d2")):
    if lab:
        h.label(lab)
    for kvt in range(2):
        for qt in range(4):
            rel = 9 if typ == 0 else (qt - kvt - (0 if typ == 1 else 2))
            b = CM + 16 * kvt + 4 * qt
            for r in range(4):
                if rel > 0:
                    h.i(f"v_mov_b32 v{b+r}, v{vT+qt}")
                elif rel < 0:
                    h.i(f"v_mov_b32 v{b+r}, v{vNEG}")
                else:
                    h.i(f"v_cndmask_b32 v{b+r}, v{vNEG}, v{vT+qt}, {sTRI[r]}")
    h.i("s_nop 1")
    h.i("s_setpc_b64 s[0:1]")

h.label("L_redo")
h.i(f"s_mov_b32 {sREDO}, 1")
h.i("s_waitcnt vmcnt(0) lgkmcnt(0)")
h.i("s_barrier")
save = e
e = h
e.i(f"v_bfe_u32 v2, {vLANE}, 2, 2")
e.i(f"v_lshlrev_b32 v2, 13, v2")
e.i(f"v_lshrrev_b32 v3, 4, {vLANE}")
e.i(f"v_lshl_add_u32 v2, v3, 6, v2")
e.i(f"v_and_b32 v4, 3, {vLANE}")
e.i(f"v_lshl_add_u32 v{vOW[0]}, v4, 4, v2")
e.i(f"v_xor_b32 v5, 32, v{vOW[0]}")
e.i(f"v_add_u32 v{vOW[1]}, {31744}, v{vOW[0]}")
e.i(f"v_add_u32 v{vOW[2]}, {2*31744}, v5")
e.i(f"v_add_u32 v{vOW[3]}, {3*31744}, v5")
p12_reader_regs()
p2_scalars()
for j in range(3):
    now(p2_w_dma(j))
for j in range(4):
    now(p2_x_load(j))
now(bias_load())
bias_unpack()
e.i("s_waitcnt vmcnt(0)")
e.i("s_barrier")
e.i("s_branch L_p2_start")

e.label("L_maxpass")
e.i("s_waitcnt vmcnt(0) lgkmcnt(0)")
e.i("s_barrier")
for k in range(64):
    e.i(f"v_accvgpr_mov_b32 a{128+k}, a{Q+k}")
e.i(f"s_mov_b32 {sMA}, 0")
e.i(f"s_mov_b32 {sMB}, {sBLK0}")
e.label("L_mp_pass")
MX = S + 0
for qt in range(4):
    e.i(f"v_mov_b32 v{P[0]+qt}, v{vNEG}")
e.i(f"s_mov_b32 {sN2}, 0")
e.label("L_mp_loop")
e.i(f"s_lshl_b32 {T1}, {sN2}, 14")
e.i(f"s_add_u32 {T1}, {T1}, {sKVH}")
e.i(f"s_sub_u32 {T1}, {T1}, {sW4K}")
e.i(f"s_add_u32 {T2}, {T1}, 4096")
for k in range(8):
    e.i(f"buffer_load_dwordx4 {a(POOL+4*k,4)}, {vL16}, {WS}, {T1 if k < 4 else T2} offen offset:{(k%4)*1024} sc1")
for qt in range(4):
    e.i(f"v_mov_b32 v{vT+qt}, 0")
e.i(f"s_lshl_b32 {T0}, {sMB}, 1")
e.i(f"s_sub_u32 {T0}, {sN2}, {T0}")
e.i(f"s_call_b64 s[0:1], L_setcm")
e.i("s_waitcnt vmcnt(0)")
for t in qk_mf(0) + qk_mf(1):
    e.i(t)
e.i("s_nop 7")
for qt in range(4):
    for kvt in range(2):
        b = Sreg(kvt, qt)
        e.i(f"v_max3_f32 v{P[0]+qt}, v{P[0]+qt}, v{b}, v{b+1}")
        e.i(f"v_max3_f32 v{P[0]+qt}, v{P[0]+qt}, v{b+2}, v{b+3}")
e.i(f"s_add_u32 {sN2}, {sN2}, 1")
e.i(f"s_lshl_b32 {T0}, {sMB}, 1")
e.i(f"s_add_u32 {T0}, {T0}, 2")
e.i(f"s_cmp_lt_u32 {sN2}, {T0}")
e.i("s_cbranch_scc1 L_mp_loop")
for x in (16, 32):
    e.i(f"v_xor_b32 v{vT}, {x}, {vLANE}")
    e.i(f"v_lshlrev_b32 v{vT}, 2, v{vT}")
    for qt in range(4):
        e.i(f"ds_bpermute_b32 v{vT+1+qt}, v{vT}, v{P[0]+qt}")
    e.i("s_waitcnt lgkmcnt(0)")
    for qt in range(4):
        e.i(f"v_max_f32 v{P[0]+qt}, v{P[0]+qt}, v{vT+1+qt}")
for qt in range(4):
    e.i(f"v_sub_f32 v{P[0]+qt}, 0, v{P[0]+qt}")
e.i(f"s_cmp_lg_u32 {sMA}, 0")
e.i("s_cbranch_scc1 L_mp_second")
for qt in range(4):
    e.i(f"v_accvgpr_write_b32 a{BASE+qt}, v{P[0]+qt}")
for k in range(16):
    if k == 12:
        e.i("s_waitcnt lgkmcnt(0)")
    e.i(f"ds_read_b128 {a(Q+4*k,4)}, v{vSTQ} offset:{k*1024}")
e.i("s_waitcnt lgkmcnt(0)")
e.i(f"s_mov_b32 {sMA}, 1")
e.i(f"s_mov_b32 {sMB}, {sBLKB}")
e.i("s_branch L_mp_pass")
e.label("L_mp_second")
for qt in range(4):
    e.i(f"v_accvgpr_write_b32 a{BASE+4+qt}, v{P[0]+qt}")
for k in range(64):
    e.i(f"v_accvgpr_mov_b32 a{Q+k}, a{128+k}")
e.i("s_branch L_maxret")
e = save

errs = check_hazards(e.lines[:main_end], "main")
errs += check_hazards(e.lines[loop_a:loop_b] + e.lines[loop_a:loop_b], "loop")
errs += check_hazards(h.lines, "ool")
for x in errs:
    print("HAZARD", x, file=sys.stderr)

out = []
out.append(f"; @launch grid=(256,1,1) block=(256,1,1) lds=163840")
out.append('.amdgcn_target "amdgcn-amd-amdhsa--gfx950"')
out.append(".text")
out.append(f".globl {NAME}_kernel")
out.append(".p2align 8")
out.append(f".type {NAME}_kernel,@function")
out.append(f"{NAME}_kernel:")
for st in [e] + stubs + [h]:
    out += [("    " + l if not l.endswith(":") else l) for l in st.lines]
out.append(f""".section .rodata,"a"
.p2align 6
.amdhsa_kernel {NAME}_kernel
  .amdhsa_next_free_vgpr 512
  .amdhsa_next_free_sgpr 102
  .amdhsa_accum_offset 256
  .amdhsa_group_segment_fixed_size 0
  .amdhsa_kernarg_size 112
  .amdhsa_user_sgpr_count 2
  .amdhsa_user_sgpr_kernarg_segment_ptr 1
  .amdhsa_system_sgpr_workgroup_id_x 1
.end_amdhsa_kernel""")
open(opt["out"], "w").write("\n".join(out) + "\n")
print(f"wrote {opt['out']}: {len(out)} lines, {len(errs)} hazards", file=sys.stderr)
```

```python
import re, sys

TRANS = ("v_exp_f32", "v_log_f32", "v_rcp_f32", "v_rsq_f32", "v_sqrt_f32")


class Em:
    def __init__(self):
        self.lines = []
        self.vm_n = 0
        self.vm_tag = {}
        self.vm_done = 0

    def i(self, text):
        for t in text.split("\n"):
            t = t.strip()
            if t:
                self.lines.append(t)

    def c(self, text):
        self.lines.append("; " + text)

    def label(self, name):
        self.lines.append(name + ":")

    def vm(self, text, tag=None):
        self.lines.append(text)
        self.vm_n += 1
        if self.vm_n - self.vm_done > 63 and getattr(self, "strict", False):
            print("VMCNT overflow risk at", text, file=sys.stderr)
        if tag is not None:
            self.vm_tag[tag] = self.vm_n

    def wvm(self, *tags, lgkm=False, cap=63):
        idx = max([self.vm_tag[t] for t in tags] + [0, self.vm_n - cap])
        if idx <= self.vm_done:
            if lgkm:
                self.lines.append("s_waitcnt lgkmcnt(0)")
            return False
        n = min(self.vm_n - idx, 63)
        self.lines.append(f"s_waitcnt vmcnt({n})" + (" lgkmcnt(0)" if lgkm else ""))
        self.vm_done = max(self.vm_done, self.vm_n - n)
        return True

    def wvm_all(self):
        self.lines.append("s_waitcnt vmcnt(0)")
        self.vm_done = self.vm_n

    def covered(self, tag):
        return self.vm_tag[tag] <= self.vm_done

    def do(self, obj):
        if callable(obj):
            obj(self)
        else:
            self.i(obj)


def WVM(*tags, lgkm=False, cap=63):
    return lambda e: e.wvm(*tags, lgkm=lgkm, cap=cap)


def kind_of(t):
    m = t.split()[0]
    if m.startswith("buffer_") or m.startswith("global_"):
        return "D", 12
    if m.startswith("ds_write"):
        return "D", 12
    if m.startswith("ds_"):
        return "d", 4
    if m.startswith("v_"):
        return "v", (8 if any(m.startswith(x) for x in TRANS) else 4)
    return "s", 4


class VMop:
    def __init__(self, text, tag=None):
        self.text, self.tag = text, tag

    def __call__(self, e):
        e.vm(self.text, self.tag)


class Item:
    __slots__ = ("pos", "kind", "cost", "obj", "stream", "dl", "sep", "after", "g")

    def __init__(self, pos, obj, stream=None, dl=None, sep=0, kind=None, cost=None):
        self.pos, self.obj, self.stream, self.dl, self.sep = pos, obj, stream, dl, sep
        self.after, self.g = [], None
        if kind is None:
            if isinstance(obj, VMop):
                kind, cost = "D", 12
            elif isinstance(obj, str) and "\n" not in obj:
                k, c = kind_of(obj)
                kind, cost = k, (c if cost is None else cost)
            elif isinstance(obj, str):
                ks = [kind_of(x) for x in obj.split("\n")]
                assert all(k == "s" for k, _ in ks), obj
                kind, cost = "s", 4 * len(ks)
            else:
                raise ValueError("kind needed")
        self.kind, self.cost = kind, cost


RANK = {"s": 0, "d": 1, "v": 2, "D": 3}


def pack(em, mf, items, pins=None, full=None, name="", verbose=False, labels=None, nos=()):
    pins, full, labels = pins or {}, full or {}, labels or {}
    N = len(mf)
    sfree = [True] * N
    bud = [8] * N
    gaps = [[] for _ in range(N)]
    for g in pins:
        sfree[g] = False
    for g in full:
        sfree[g] = False
        bud[g] = 0
    last = {}
    over = 0

    def order_ok(g, it):
        return all(RANK[o.kind] <= RANK[it.kind] for o in gaps[g] if o.stream == it.stream and it.stream is not None)

    def fits(g, it):
        if g in full or not order_ok(g, it) or (g in nos and it.kind in "sD"):
            return False
        if it.kind == "D":
            return sfree[g] and bud[g] == 8
        if it.kind == "s":
            need = it.cost - (4 if sfree[g] else 0)
            return bud[g] >= need and (bud[g] > 0 or need == 0) and not any(o.kind == "D" for o in gaps[g])
        return bud[g] >= it.cost

    for it in sorted(items, key=lambda x: x.pos):
        g = max(0, int(it.pos))
        if it.stream is not None and it.stream in last:
            g = max(g, last[it.stream] + it.sep)
        for d in it.after:
            assert d.g is not None, (name, "dependency placed later", it.obj, d.obj)
            g = max(g, d.g + 1)
        dl = N - 1 if it.dl is None else min(it.dl, N - 1)
        assert g <= dl, (name, "cannot meet deadline", it.obj, g, dl)
        g0 = g
        while g <= dl and not fits(g, it):
            g += 1
        if g > dl:
            cand = [x for x in range(g0, dl + 1) if x not in full and order_ok(x, it) and not (x in nos and it.kind in "sD")]
            assert cand, (name, it.obj)
            g = max(cand, key=lambda x: (bud[x] + (4 if sfree[x] else 0), -x))
            over += 1
        if it.kind == "D":
            bud[g] -= 8 + (0 if sfree[g] else 4)
            sfree[g] = False
        elif it.kind == "s":
            bud[g] -= it.cost - (4 if sfree[g] else 0)
            sfree[g] = False
        else:
            bud[g] -= it.cost
        gaps[g].append(it)
        it.g = g
        if it.stream is not None:
            last[it.stream] = g
    excess = sum(-c for c in bud if c < 0)
    if verbose or over:
        print(f"[pack {name}] N={N} overflow_items={over} excess_cycles={excess} free={sum(c for c in bud if c > 0)}", file=sys.stderr)
    for k in range(N):
        if k in labels:
            em.label(labels[k])
        em.i(mf[k])
        if k in pins:
            em.do(pins[k])
        for o in full.get(k, []):
            em.do(o)
        for it in sorted(gaps[k], key=lambda x: RANK[x.kind]):
            em.do(it.obj)


_REG = re.compile(r"\b([vas])(\d+)\b|\b([vas])\[(\d+):(\d+)\]")


def regs(op):
    out = set()
    for m in _REG.finditer(op):
        if m.group(1):
            out.add((m.group(1), int(m.group(2))))
        else:
            for r in range(int(m.group(4)), int(m.group(5)) + 1):
                out.add((m.group(3), r))
    if re.search(r"\bvcc\b", op):
        out.add(("s", "vcc"))
    if re.search(r"\bm0\b", op):
        out.add(("s", "m0"))
    if re.search(r"\bexec\b", op):
        out.add(("s", "exec"))
    return out


def parse(line):
    s = line.split(";")[0].strip()
    if not s or s.endswith(":") or s.startswith("."):
        return None
    parts = s.split(None, 1)
    mn = parts[0]
    ops = [o.strip() for o in parts[1].split(",")] if len(parts) > 1 else []
    d = dict(mn=mn, w=set(), r=set(), kind="other", line=s, states=1)
    if mn == "s_nop":
        d["states"] = int(ops[0]) + 1
        return d
    if mn.startswith("v_mfma"):
        d["kind"] = "mfma"
        d["w"] = regs(ops[0]); d["A"] = regs(ops[1]); d["B"] = regs(ops[2]); d["C"] = regs(ops[3])
        d["r"] = d["A"] | d["B"] | d["C"]
        d["passes"] = 4 if "16x16" in mn else 8
        return d
    if mn.startswith("buffer_") or mn.startswith("global_"):
        d["kind"] = "vmem"
        lds = s.endswith(" lds") or " lds " in s
        if mn.startswith("buffer_load") and lds:
            d["r"] = regs(",".join(ops)) | {("s", "m0")}
            d["dma"] = True
        elif "load" in mn:
            d["w"] = regs(ops[0]); d["r"] = regs(",".join(ops[1:]))
        elif mn in ("buffer_inv", "buffer_wbl2"):
            pass
        else:
            d["r"] = regs(",".join(ops))
            if mn.endswith("x4") or mn.endswith("x3"):
                d["sdata"] = regs(ops[0])
        return d
    if mn.startswith("ds_"):
        d["kind"] = "ds"
        if mn.startswith("ds_read") or mn.startswith("ds_bpermute") or mn.startswith("ds_swizzle"):
            d["w"] = regs(ops[0]); d["r"] = regs(",".join(ops[1:]))
        else:
            d["r"] = regs(",".join(ops))
        return d
    if mn.startswith("v_"):
        d["kind"] = "valu"
        if mn.startswith("v_cmp"):
            d["w"] = regs(ops[0]); d["r"] = regs(",".join(ops[1:]))
        elif mn.startswith("v_permlane"):
            d["w"] = regs(ops[0]) | regs(ops[1]); d["r"] = set(d["w"]); d["perm"] = True
        elif mn.startswith("v_readfirstlane") or mn.startswith("v_readlane"):
            d["w"] = regs(ops[0]); d["r"] = regs(",".join(ops[1:])); d["rl"] = True
        else:
            d["w"] = regs(ops[0]); d["r"] = regs(",".join(ops[1:]))
            if mn.startswith("v_fmac") or mn.startswith("v_dot2c"):
                d["r"] |= d["w"]
        if "dpp" in mn or "row_" in s:
            d["dpp"] = True
            d["r"] |= d["w"]
        d["trans"] = any(mn.startswith(t) for t in TRANS)
        return d
    if mn.startswith("s_"):
        d["kind"] = "salu"
        if mn.startswith("s_cmp") or mn.startswith("s_bitcmp") or mn.startswith("s_cbranch") or mn in ("s_waitcnt", "s_barrier", "s_branch", "s_endpgm", "s_setpc_b64", "s_sleep", "s_setprio"):
            d["r"] = regs(",".join(ops))
        else:
            d["w"] = regs(ops[0]) if ops else set(); d["r"] = regs(",".join(ops[1:]))
        return d
    return d


def check_hazards(lines, name=""):
    ins = [p for p in (parse(l) for l in lines) if p]
    errs = []
    pos = []
    c = 0
    for p in ins:
        pos.append(c)
        c += p["states"]

    def dist(a, b):
        return pos[b] - pos[a] - ins[a]["states"]

    W = 24
    for b, q in enumerate(ins):
        for a in range(b - 1, max(-1, b - W), -1):
            p = ins[a]
            dd = dist(a, b)
            if dd >= 20:
                break
            need = 0
            why = ""
            vw = {x for x in p["w"] if x[0] in "va"}
            sw = {x for x in p["w"] if x[0] == "s"}
            if p["kind"] == "mfma":
                n1 = {4: 8, 8: 12}[p["passes"]]
                if q["kind"] == "mfma":
                    if p["w"] & (q["A"] | q["B"]):
                        need, why = n1, "mfmaD->mfma A/B"
                    elif p["w"] & q["C"] and p["w"] != q["C"]:
                        need, why = {4: 6, 8: 10}[p["passes"]], "mfmaD->mfma C overlap"
                    elif p["w"] & q["w"] and p["w"] != q["C"]:
                        need, why = n1, "mfmaD->mfma WAW (conservative)"
                elif q["kind"] in ("valu", "vmem", "ds"):
                    if p["w"] & (q["r"] | q["w"]):
                        need, why = n1, "mfmaD->valu/mem"
                    elif q["kind"] == "valu" and p["C"] & q["w"]:
                        need, why = {4: 3, 8: 7}[p["passes"]], "mfma C read -> valu write"
            if p["kind"] == "valu":
                if q["kind"] == "mfma" and vw & q["r"]:
                    need, why = 2, "valu->mfma"
                if q["kind"] == "valu":
                    if p.get("trans") and not q.get("trans") and vw & q["r"]:
                        need, why = max(need, 1), "trans->valu"
                    if q.get("perm") and vw & q["r"]:
                        need, why = 2, "valu->permlane"
                    if q.get("dpp") and vw & q["r"]:
                        need, why = 2, "valu->dpp"
                    if q.get("rl") and vw & q["r"]:
                        need, why = max(need, 1), "valu->readlane"
                    if sw & q["r"]:
                        need, why = 2, "valu sgpr->valu"
                if q["kind"] == "vmem" and sw & q["r"]:
                    need, why = 5, "valu sgpr->vmem"
                if q["kind"] == "salu" and sw & q["r"] and not q["mn"].startswith("s_cbranch"):
                    need, why = 1, "valu sgpr->salu (pad)"
            if p["kind"] == "salu" and ("s", "m0") in p["w"] and q.get("dma"):
                need, why = 1, "m0->dma"
            if p.get("sdata") and q["kind"] in ("valu", "mfma", "ds", "vmem") and p["sdata"] & q["w"]:
                need, why = 2, "store data WAR"
            if need > dd:
                errs.append(f"{name}: need {need} have {dd} [{why}]\n    {p['line']}\n    {q['line']}")
    return errs
```

```python
import sys, struct
from asmlib import Em, Item, pack, VMop, WVM, check_hazards

NAME = "recurrent_scan__compressed_kv_cla__dense_activation_squared_relu__prompt"
opt = dict(x_oacc=0, x_c0=0, x_noexp=0, x_nord=0, x_nodma=0, x_nobar=0, x_rd=0, stamps=0, out="k.s", verbose=0, forcefail=0, dbgst=0)
for a_ in sys.argv[1:]:
    k_, v_ = a_.split("=")
    opt[k_] = v_ if k_ == "out" else int(v_)

FLG, XN, KV, HH, CTX, PART, STAMP = 0, 1 << 20, 4 << 20, 36 << 20, 44 << 20, 60 << 20, 80 << 20
HUGE = 0x40000000
F_KV, F_H, F_CTX, F_PART = 0, 32 * 128, 64 * 128, 96 * 128
NFLAGLINES = 160


def f32(x):
    return "0x%08x" % struct.unpack("<I", struct.pack("<f", x))[0]


def v(i, n=1): return f"v{i}" if n == 1 else f"v[{i}:{i+n-1}]"
def a(i, n=1): return f"a{i}" if n == 1 else f"a[{i}:{i+n-1}]"
def s(i, n=1): return f"s{i}" if n == 1 else f"s[{i}:{i+n-1}]"


WS, SX, SC, SWQ, SWK, SWV, SWO, SW1, SW2, SOUT, SB1, SB2, SDBG = [s(4 + 4 * k, 4) for k in range(13)]
sB, sW, sH, sI, sREDO = "s2", "s56", "s57", "s58", "s59"
sTS, sHST = "s60", "s61"
sEV = "s[62:63]"
sTD, sTX = "s64", "s65"
sFAIL = "s[66:67]"
sW4K, sKVH = "s68", "s69"
sTA, sBLK0, sBLKB, sLO, sDEL = "s70", "s71", "s72", "s73", "s74"
sGM, sDM, sGT, sDT = "s75", "s76", "s77", "s78"
sN2, sMA, sMB = "s79", "s80", "s81"
sCB, sWB, sXB, sW1B, sW8K, sNB, sKVT = "s82", "s83", "s84", "s85", "s86", "s87", "s88"
sXD = "s82"
T0, T1, T2, T3 = "s89", "s90", "s91", "s3"
sTRI = ["s[92:93]", "s[94:95]", "s[96:97]", "s[98:99]"]
sSPIN, sST = "s100", "s101"

vL16, vLANE, vFLAG, vFOFF, vONE = "v255", "v254", "v253", "v252", "v251"
vTMP = 250
vOW, vOC, vCR = [228, 229, 230, 231], [232, 233, 234, 235], [236, 237]
vTK, vTN, vON = [[238, 239], [240, 241]], [[242, 243], [244, 245]], [246, 247, 248, 249]
vOM, vSTW = [228, 229, 230, 231], 232

MF = "v_mfma_f32_16x16x32_bf16"
ZERO = 124


def zero16(dst):
    return f"v_mfma_f32_32x32x16_bf16 {dst}, {a(ZERO,4)}, {a(ZERO,4)}, 0"


e = Em()
e.strict = True
stubs = []
nlab = [0]


def newlab(p):
    nlab[0] += 1
    return f"L_{p}_{nlab[0]}"


def stamp(k, em=None):
    if not opt["stamps"]:
        return
    em = em or e
    em.i("s_memtime s[0:1]")
    em.i("s_waitcnt lgkmcnt(0)")
    em.i("v_mov_b32 v226, s0")
    em.i(f"v_mov_b32 v225, {sST}")
    em.i(f"v_cmp_eq_u32 vcc, 0, {vLANE}")
    em.i(f"v_mov_b32 v224, {HUGE}")
    em.i("s_nop 0")
    em.i("v_cndmask_b32 v225, v224, v225, vcc")
    if opt["dbgst"]:
        em.vm(f"buffer_store_dword v226, v225, {SDBG}, 0 offen offset:{4*(k+1)}")
    else:
        em.vm(f"buffer_store_dword v226, v225, {WS}, 0 offen offset:{4*k}")


def STAMPI(pos, k):
    return [Item(pos, lambda em: stamp(k, em), "stamp", kind="D", cost=12)] if opt["stamps"] else []


def flag_load_ops(off_lines, nd, tag, shift=2, dw=1, srd=WS):
    dst = vFLAG if dw == 1 else "v[252:253]"
    adr = vFOFF if dw == 1 else f"v{vTMP}"
    return [f"v_min_u32 {adr}, {nd-1}, {vLANE}", f"v_lshlrev_b32 {adr}, {shift}, {adr}",
            ("x", off_lines + [f"v_add_u32 {adr}, {T0}, {adr}"]),
            VMop(f"buffer_load_dword{'x2' if dw == 2 else ''} {dst}, {adr}, {srd}, 0 offen sc1", tag)]


def flag_check(em, tag, want, srd=WS, dw=1):
    lab, ret = newlab("spin"), newlab("spinret")
    dst = vFLAG if dw == 1 else "v[252:253]"
    adr = vFOFF if dw == 1 else f"v{vTMP}"
    test = ([] if dw == 1 else [f"v_min_u32 {vFLAG}, {vFOFF}, {vFLAG}"]) + [f"v_cmp_gt_u32 vcc, {want}, {vFLAG}", "s_nop 0"]
    em.wvm(tag)
    for t in test:
        em.i(t)
    em.i(f"s_cbranch_vccnz {lab}")
    em.label(ret)
    st = Em()
    st.label(lab)
    st.i(f"s_mov_b32 {sSPIN}, 0")
    st.label(lab + "_l")
    st.i(f"s_add_u32 {sSPIN}, {sSPIN}, 1")
    st.i(f"s_cmp_gt_u32 {sSPIN}, 0x20000")
    st.i(f"s_cbranch_scc1 {ret}")
    st.i("s_sleep 1")
    st.i(f"buffer_load_dword{'x2' if dw == 2 else ''} {dst}, {adr}, {srd}, 0 offen sc1")
    st.i("s_waitcnt vmcnt(0)")
    for t in test:
        st.i(t)
    st.i(f"s_cbranch_vccnz {lab}_l")
    st.i(f"s_branch {ret}")
    stubs.append(st)


def flag_set_ops(wait_tag, off_lines):
    return [("x", [WVM(wait_tag)] + off_lines + [f"v_mov_b32 v{vTMP}, {T0}"]),
            VMop(f"buffer_store_dword {vONE}, v{vTMP}, {WS}, 0 offen sc1")]


def mk(pos, op, stream=None, dl=None, sep=0):
    if isinstance(op, tuple):
        blk = op[1]
        return Item(pos, lambda em, blk=blk: [em.do(o) for o in blk], stream, dl, sep, kind="D", cost=4 * len(blk))
    return Item(pos, op, stream, dl, sep)


def spread(ops, lo, hi, stream, dl=None, after=None):
    n = len(ops)
    out = [mk(lo + (hi - lo) * k / n, o, stream, dl) for k, o in enumerate(ops)]
    if after and out:
        out[0].after = list(after)
    return out


def now(ops, em=None):
    em = em or e
    for o in ops:
        if isinstance(o, tuple):
            for x in o[1]:
                em.do(x)
        else:
            em.do(o)


def cvt4(dst, s0, s1):
    return [f"v_cvt_pk_bf16_f32 v{dst}, v{s0}, v{s0+1}", f"v_cvt_pk_bf16_f32 v{dst+1}, v{s0+2}, v{s0+3}",
            f"v_cvt_pk_bf16_f32 v{dst+2}, v{s1}, v{s1+1}", f"v_cvt_pk_bf16_f32 v{dst+3}, v{s1+2}, v{s1+3}"]


def inner_ops(dst0, dst1, gshift, t0, t1):
    return [f"v_bfe_u32 v{t0}, {vLANE}, 2, 2", f"v_lshlrev_b32 v{t0}, 6, v{t0}", f"v_and_b32 v{t1}, 3, {vLANE}",
            f"v_lshl_add_u32 v{t0}, v{t1}, 3, v{t0}", f"v_bfe_u32 v{t1}, {vLANE}, 4, 1", f"v_lshl_add_u32 v{t0}, v{t1}, 5, v{t0}",
            f"v_lshrrev_b32 v{t1}, 4, {vLANE}", f"v_lshl_add_u32 v{dst0}, v{t1}, {gshift}, v{t0}", f"v_xor_b32 v{dst1}, 32, v{dst0}"]


def n_src_ops(dst, pitch, t0, t1):
    return [f"v_lshrrev_b32 v{t0}, 5, {vLANE}", f"v_bfe_u32 v{t1}, {vLANE}, 2, 2", f"v_lshl_add_u32 v{t0}, v{t0}, 2, v{t1}",
            f"v_mul_u32_u24 v{t0}, {pitch}, v{t0}", f"v_bfe_u32 v{t1}, {vLANE}, 4, 1", f"v_lshl_add_u32 v{t0}, v{t1}, 6, v{t0}",
            f"v_and_b32 v{t1}, 3, {vLANE}", f"v_lshl_add_u32 v{dst[0]}, v{t1}, 4, v{t0}", f"v_xor_b32 v{t1}, 32, v{dst[0]}",
            f"v_add_u32 v{dst[1]}, {8*pitch-1024}, v{t1}", f"v_add_u32 v{dst[2]}, {2*(8*pitch-1024)}, v{dst[0]}",
            f"v_add_u32 v{dst[3]}, {3*(8*pitch-1024)}, v{t1}"]


def tn_ops(t0, t1, t2, t3):
    return inner_ops(t0, t1, 10, t2, t3) + [f"v_add_u32 v{vTN[k][c]}, {65536*(k+1)}, v{(t0, t1)[c]}" for k in range(2) for c in range(2)]


e.i(f"s_cmp_ge_u32 {sB}, 256")
e.i("s_cbranch_scc1 L_exit")
e.i("s_load_dwordx16 s[64:79], s[0:1], 0")
e.i("s_load_dwordx8 s[80:87], s[0:1], 64")
e.i("s_load_dwordx4 s[88:91], s[0:1], 96")
e.i(f"v_and_b32 {vLANE}, 63, v0")
e.i("v_lshrrev_b32 v1, 6, v0")
e.i(f"v_lshlrev_b32 {vL16}, 4, {vLANE}")
e.i(f"v_readfirstlane_b32 {sW}, v1")
e.i(f"s_and_b32 {sH}, {sB}, 7")
e.i(f"s_lshl_b32 {sH}, {sH}, 2")
e.i(f"s_bfe_u32 s3, {sB}, 0x20003")
e.i(f"s_add_u32 {sH}, {sH}, s3")
e.i(f"s_lshr_b32 {sI}, {sB}, 5")
e.i(f"s_mov_b32 {sREDO}, 0")
e.i(f"v_mov_b32 {vONE}, 1")
e.i(f"v_bfe_u32 v2, {vLANE}, 2, 2")
e.i("v_lshlrev_b32 v2, 13, v2")
e.i(f"v_lshrrev_b32 v3, 4, {vLANE}")
e.i("v_lshl_add_u32 v2, v3, 6, v2")
e.i(f"v_and_b32 v4, 3, {vLANE}")
e.i(f"v_lshl_add_u32 v{vOW[0]}, v4, 4, v2")
e.i(f"v_xor_b32 v5, 32, v{vOW[0]}")
e.i(f"v_add_u32 v{vOW[1]}, {31744}, v{vOW[0]}")
e.i(f"v_add_u32 v{vOW[2]}, {2*31744}, v5")
e.i(f"v_add_u32 v{vOW[3]}, {3*31744}, v5")
e.i(f"v_and_b32 v4, 7, {vLANE}")
e.i("v_xor_b32 v4, v4, v3")
e.i(f"v_lshrrev_b32 v2, 3, {vLANE}")
e.i("v_lshlrev_b32 v2, 10, v2")
e.i(f"v_lshl_add_u32 v{vOC[0]}, v4, 4, v2")
e.i(f"v_xor_b32 v5, 64, v{vOC[0]}")
e.i(f"v_add_u32 v{vOC[1]}, {7168}, v5")
e.i(f"v_add_u32 v{vOC[2]}, {2*7168}, v{vOC[0]}")
e.i(f"v_add_u32 v{vOC[3]}, {3*7168}, v5")
e.i(f"s_lshl_b32 s92, {sW}, 16")
e.i(f"s_lshl_b32 s93, {sI}, 18")
e.i("s_add_u32 s92, s92, s93")
e.i(f"s_lshl_b32 s93, {sW}, 17")
e.i(f"s_lshl_b32 s94, {sH}, 8")
e.i("s_add_u32 s93, s93, s94")
e.i("s_waitcnt lgkmcnt(0)")


def srd(dst, src, nb):
    e.i(f"s_mov_b32 s{dst}, s{src}")
    e.i(f"s_mov_b32 s{dst+1}, s{src+1}")
    e.i(f"s_mov_b32 s{dst+2}, {nb}")
    e.i(f"s_mov_b32 s{dst+3}, 0x20000")


for dst, src, nb in [(4, 90, 268435456), (8, 64, 2097152), (12, 66, 2097152), (16, 68, 4194304), (20, 70, 4194304),
                     (24, 72, 4194304), (28, 74, 4194304), (32, 78, 1835008), (36, 82, 1835008), (40, 86, 2097152),
                     (44, 80, 3584), (48, 84, 1024), (52, 88, 256)]:
    srd(dst, src, nb)
e.i(f"s_lshl_b32 {sW4K}, {sW}, 12")
e.i(f"s_lshl_b32 {sW8K}, {sW}, 13")
e.i(f"s_mov_b32 {sCB}, s92")
e.i(f"s_mov_b32 {sWB}, s93")
if opt["stamps"]:
    if opt["dbgst"]:
        e.i(f"s_or_b32 {sST}, {sB}, {sW}")
        e.i(f"s_cmp_eq_u32 {sST}, 0")
        e.i(f"s_cselect_b32 {sST}, 0, {HUGE}")
    else:
        e.i(f"s_lshl_b32 {sST}, {sB}, 2")
        e.i(f"s_add_u32 {sST}, {sST}, {sW}")
        e.i(f"s_lshl_b32 {sST}, {sST}, 7")
        e.i(f"s_add_u32 {sST}, {sST}, {STAMP}")
stamp(0)


def waddr(n):
    return 98304 + (n % 4) * 16384 if n < 8 else 65536 + (n % 6) * 16384


def c_dma(j):
    out = []
    for half in range(2):
        out.append(f"s_add_u32 m0, {sW8K}, {(j % 3) * 32768 + half * 4096}")
        out.append(f"s_add_u32 {sTD}, {sCB}, {j*128 + half*32768}")
        out += [VMop(f"buffer_load_dwordx4 v{vOC[q]}, {SC}, {sTD} offen offset:{q*1024} lds", f"c{j}") for q in range(4)]
    return out


PASS = ["V0", "V1", "M", "Q0", "Q1"]


def w_dma(n):
    if n < 8:
        srd_, base, off, vo = SWK, sWB, n * 524288, vOW
    else:
        p, st = PASS[(n - 8) // 4], (n - 8) % 4
        if p == "M":
            srd_, base, off, vo = SW1, sW1B, st * 128 * 3584, vOM
        else:
            srd_, base, off, vo = (SWV if p[0] == "V" else SWQ), sNB, st * 1048576 + int(p[1]) * 128, vON
    return [f"s_add_u32 m0, {sW4K}, {waddr(n)}", f"s_add_u32 {sTD}, {base}, {off}"] + \
           [VMop(f"buffer_load_dwordx4 v{vo[q]}, {srd_}, {sTD} offen offset:{q*1024} lds", f"w{n}") for q in range(4)]


def x_load(j):
    out = []
    for half in range(2):
        out.append(f"s_add_u32 {sTX}, {sXB}, {j*262144 + half*4096}")
        out += [VMop(f"buffer_load_dwordx4 {a(32*j + 16*half + 4*q, 4)}, {vL16}, {WS}, {sTX} offen offset:{q*1024} sc1", f"x{j}") for q in range(4)]
    return out


now(c_dma(0) + w_dma(0))
sROW = "s92"
e.i(f"s_lshl_b32 {sROW}, {sB}, 3")
e.i(f"s_lshl_b32 {T0}, {sW}, 1")
e.i(f"s_add_u32 {sROW}, {sROW}, {T0}")
e.i(f"s_lshl_b32 {T0}, {sROW}, 10")
LN = 128
e.vm(f"buffer_load_dwordx4 {v(LN,4)}, {vL16}, {SX}, {T0} offen", "x")
e.vm(f"buffer_load_dwordx4 {v(LN+4,4)}, {vL16}, {SX}, {T0} offen offset:1024", "x")
now(c_dma(1) + w_dma(1) + c_dma(2) + w_dma(2) + w_dma(3))
e.i(f"v_and_b32 v2, 31, {vLANE}")
e.i("v_lshlrev_b32 v2, 2, v2")
e.i(f"s_lshl_b32 {T0}, {sB}, 7")
e.i(f"s_cmp_lt_u32 {sB}, {NFLAGLINES}")
e.i(f"s_cselect_b32 {T0}, {T0}, {HUGE}")
e.i("v_mov_b32 v3, 0")
e.vm(f"buffer_store_dword v3, v2, {WS}, {T0} offen sc1", "zero")
now(inner_ops(2, 3, 11, 4, 5))
for k in range(2):
    for c in range(2):
        e.i(f"v_add_u32 v{vTK[k][c]}, {65536*(k+1)}, v{2+c}")
now(tn_ops(2, 3, 4, 5))
now(n_src_ops(vON, 8192, 2, 3))
e.i(f"v_and_b32 v2, 15, {vLANE}")
e.i("v_lshrrev_b32 v3, 1, v2")
e.i(f"v_lshrrev_b32 v4, 4, {vLANE}")
e.i("v_xor_b32 v3, v3, v4")
e.i("v_lshlrev_b32 v2, 7, v2")
e.i("v_lshl_add_u32 v2, v3, 4, v2")
e.i(f"v_add_u32 v{vCR[0]}, {sW8K}, v2")
e.i(f"v_xor_b32 v{vCR[1]}, 64, v{vCR[0]}")
sc_ops = [
    f"s_lshl_b32 {sNB}, {sH}, 8", f"s_lshl_b32 {T0}, {sW}, 18", f"s_add_u32 {sNB}, {sNB}, {T0}",
    f"s_lshl_b32 {sW1B}, {sH}, 7", f"s_mul_i32 {T0}, {sW}, {32*3584}", f"s_add_u32 {sW1B}, {sW1B}, {T0}",
    f"s_and_b32 {T0}, {sW}, 1", f"s_lshl_b32 {T1}, {sI}, 1", f"s_add_u32 {T0}, {T0}, {T1}", f"s_sub_u32 {sBLKB}, 31, {T0}",
    f"s_lshl_b32 {T1}, {T0}, 1", f"s_add_u32 {T1}, {T1}, 2", f"s_cmp_lt_u32 {sW}, 2",
    f"s_cselect_b32 {sBLK0}, {sBLKB}, {T0}", f"s_cselect_b32 {sTA}, 99, {T1}",
    f"s_lshl_b32 {sXB}, {sBLK0}, 13", f"s_add_u32 {sXB}, {sXB}, {XN}",
    f"s_lshl_b32 {sLO}, {sI}, 2", f"s_add_u32 {sLO}, {sLO}, 2",
    f"s_sub_u32 {sDEL}, {sW}, 1", f"s_max_i32 {sDEL}, {sDEL}, 0",
    f"s_lshl_b32 {sKVH}, {sH}, 20", f"s_add_u32 {sKVH}, {sKVH}, {KV}",
    f"s_lshl_b32 {T0}, {sI}, 17", f"s_lshl_b32 {T1}, {sW}, 15", f"s_add_u32 {T0}, {T0}, {T1}", f"s_add_u32 {sKVT}, {T0}, {sKVH}",
    f"s_add_u32 {sKVH}, {sKVH}, {sW4K}",
    f"s_lshl_b32 {T0}, {sH}, 5", f"s_add_u32 {T0}, {T0}, {sBLK0}", f"s_lshl_b32 {T0}, {T0}, 13", f"s_add_u32 {sHST}, {T0}, {HH}"]
now(sc_ops)

POOLV = 192


def poolv(h, f): return v(POOLV + 16 * h + 4 * f, 4)


def w_reads(n, g):
    adr = waddr(n) - 65536
    hi, off = adr // 65536, adr % 65536
    out = []
    for f in range(4):
        for u in range(2):
            d = v(POOLV + 16 * (g & 1) + 4 * f + 2 * u, 2)
            if n < 8:
                out.append(f"ds_read_b64_tr_b16 {d}, v{vTK[hi][f >> 1]} offset:{off + (f & 1)*8192 + u*1024 + g*256}")
            else:
                out.append(f"ds_read_b64_tr_b16 {d}, v{vTN[hi][g & 1]} offset:{off + f*4096 + u*512 + (g >> 1)*256}")
    return out


def c_reads(j):
    return [f"ds_read_b128 {a(32*j + 8*rt + 4*ks, 4)}, v{vCR[ks]} offset:{((j % 3) % 2)*32768 + rt*2048}" for rt in range(4) for ks in range(2)]


def Ls(k): return 8 * k
def Us(k): return 8 * k + 4
def Cs(k): return 128 + 4 * k


BANK = {"V0": Cs, "V1": Us, "M": Ls, "Q0": Cs, "Q1": Us}


def tile(p, ct, rt):
    idx = ((rt >> 1) * 4 + ct) * 2 + (rt & 1) if p[0] == "V" else (rt * 2 + (ct >> 1)) * 2 + (ct & 1)
    return BANK[p](idx)


def stage_mfmas(n):
    mf = []
    for g in range(4):
        for rt in range(4):
            if n < 8:
                for cI in range(2):
                    for ks in range(2):
                        d = v(32 * rt + 4 * (2 * g + cI), 4)
                        mf.append(f"{MF} {d}, {poolv(g & 1, 2*cI+ks)}, {a(32*n + 8*rt + 4*ks, 4)}, {'0' if n == 0 and ks == 0 else d}")
            else:
                p, st = PASS[(n - 8) // 4], (n - 8) % 4
                d = v(tile(p, g, rt), 4)
                for ks in range(4):
                    act = a(32 * (2 * st + (ks >> 1)) + 8 * rt + 4 * (ks & 1), 4)
                    w = poolv(g & 1, ks)
                    c0 = v(Cs(2 * g + 1), 4) if p == "M" else "0"
                    A_, B_ = (act, w) if p[0] == "V" else (w, act)
                    mf.append(f"{MF} {d}, {A_}, {B_}, {c0 if st == 0 and ks == 0 else d}")
    return mf


def t_set(ee):
    slot = (ee + 5) & 3
    out = [("x", [f"s_add_u32 m0, {sW4K}, {slot*32768}", f"s_sub_u32 {T0}, {ee+5}, {sDEL}", f"s_lshl_b32 {T1}, {T0}, 14",
                  f"s_add_u32 {T1}, {T1}, {sKVH}", f"s_cmp_le_u32 {T0}, 32", f"s_cselect_b32 {sTD}, {T1}, {HUGE}"])]
    out += [VMop(f"buffer_load_dwordx4 {vL16}, {WS}, {sTD} offen offset:{q*1024} sc1 lds", f"T{ee+3}") for q in range(4)]
    if ee >= -3:
        out.append(("x", [f"s_add_u32 m0, {sW4K}, {slot*32768 + 16384}", f"s_sub_u32 {T0}, {ee+5}, {sDEL}", f"s_sub_u32 {T1}, 65, {T0}",
                          f"s_lshl_b32 {T1}, {T1}, 14", f"s_add_u32 {T1}, {T1}, {sKVH}", f"s_cmp_ge_i32 {T0}, {sLO}",
                          f"s_cselect_b32 {sTD}, {T1}, {HUGE}"]))
        out += [VMop(f"buffer_load_dwordx4 {vL16}, {WS}, {sTD} offen offset:{q*1024} sc1 lds", f"T{ee+3}") for q in range(4)]
    return out


def ln_stream():
    o = []
    def I(t, sep=0, cost=None): o.append((t, sep, cost))
    XR, SM, MU, MB, TM = [LN + 8, LN + 16], [LN + 24, LN + 25], [LN + 26, LN + 27], [LN + 28, LN + 29], LN + 30
    SS = ["s93", "s94"]
    def bf16r(dst, src, sep=0):
        I(f"v_cvt_pk_bf16_f32 v{dst}, v{src}, v{src}", sep)
        I(f"v_lshlrev_b32 v{dst}, 16, v{dst}")
    def wsum():
        first = True
        for sh in ("row_shr:1 row_mask:0xf bank_mask:0xf bound_ctrl:0", "row_shr:2 row_mask:0xf bank_mask:0xf bound_ctrl:0",
                   "row_shr:4 row_mask:0xf bank_mask:0xf bound_ctrl:0", "row_shr:8 row_mask:0xf bank_mask:0xf bound_ctrl:0",
                   "row_bcast:15 row_mask:0xa bank_mask:0xf", "row_bcast:31 row_mask:0xc bank_mask:0xf"):
            for rr in range(2):
                I(f"v_add_f32_dpp v{SM[rr]}, v{SM[rr]}, v{SM[rr]} {sh}", 2 if first and rr == 0 else 1)
            first = False
        I(f"v_readlane_b32 {SS[0]}, v{SM[0]}, 63", 1)
        I(f"v_readlane_b32 {SS[1]}, v{SM[1]}, 63", 1)
    for rr in range(2):
        for k in range(4):
            I(f"v_lshlrev_b32 v{XR[rr]+2*k}, 16, v{LN+4*rr+k}")
            I(f"v_and_b32 v{XR[rr]+2*k+1}, 0xffff0000, v{LN+4*rr+k}")
    for rr in range(2):
        I(f"v_add_f32 v{SM[rr]}, v{XR[rr]}, v{XR[rr]+1}")
        for k in range(2, 8):
            I(f"v_add_f32 v{SM[rr]}, v{SM[rr]}, v{XR[rr]+k}")
    wsum()
    for rr in range(2):
        I(f"v_mov_b32 v{MU[rr]}, {SS[rr]}", 2 if rr == 0 else 0)
        I(f"v_mul_f32 v{MU[rr]}, {f32(1/512)}, v{MU[rr]}")
        bf16r(MB[rr], MU[rr])
        I(f"v_sub_f32 v{TM}, v{XR[rr]}, v{MU[rr]}")
        I(f"v_mul_f32 v{SM[rr]}, v{TM}, v{TM}")
        for k in range(1, 8):
            I(f"v_sub_f32 v{TM}, v{XR[rr]+k}, v{MU[rr]}")
            I(f"v_fmac_f32 v{SM[rr]}, v{TM}, v{TM}")
    wsum()
    for rr in range(2):
        r = MU[rr]
        I(f"v_mov_b32 v{r}, {SS[rr]}", 2 if rr == 0 else 0)
        I(f"v_mul_f32 v{r}, {f32(1/512)}, v{r}")
        bf16r(r, r)
        I(f"v_add_f32 v{r}, {f32(1e-5)}, v{r}")
        bf16r(r, r)
        I(f"v_sqrt_f32 v{r}, v{r}")
        bf16r(r, r, 1)
        I(f"v_rcp_f32 v{r}, v{r}")
        for k in range(4):
            x0, x1 = XR[rr] + 2 * k, XR[rr] + 2 * k + 1
            I(f"v_sub_f32 v{x0}, v{x0}, v{MB[rr]}")
            I(f"v_sub_f32 v{x1}, v{x1}, v{MB[rr]}")
            I(f"v_cvt_pk_bf16_f32 v{TM}, v{x0}, v{x1}")
            I(f"v_lshlrev_b32 v{x0}, 16, v{TM}")
            I(f"v_and_b32 v{x1}, 0xffff0000, v{TM}")
            I(f"v_mul_f32 v{x0}, v{x0}, v{r}")
            I(f"v_mul_f32 v{x1}, v{x1}, v{r}")
            I(f"v_cvt_pk_bf16_f32 v{LN+4*rr+k}, v{x0}, v{x1}")
    I(f"v_lshrrev_b32 v{TM}, 3, {vLANE}")
    I(f"v_lshlrev_b32 v{TM}, 18, v{TM}")
    I(f"v_bfe_u32 v{TM+1}, {vLANE}, 2, 1")
    I(f"v_lshl_add_u32 v{TM}, v{TM+1}, 10, v{TM}")
    I(f"v_and_b32 v{TM+1}, 3, {vLANE}")
    I(f"v_lshl_add_u32 v{TM}, v{TM+1}, 8, v{TM}")
    for t in [f"s_lshr_b32 s93, {sROW}, 4", "s_lshl_b32 s93, s93, 11", f"s_and_b32 s94, {sROW}, 15", "s_lshl_b32 s94, s94, 4",
              "s_add_u32 s93, s93, s94", f"s_add_u32 s93, s93, {XN}"]:
        I(t)
    I(VMop(f"buffer_store_dwordx4 {v(LN,4)}, v{TM}, {WS}, s93 offen sc1", "xn"))
    I(VMop(f"buffer_store_dwordx4 {v(LN+4,4)}, v{TM}, {WS}, s93 offen offset:16 sc1", "xn"))
    return o


Q = 0
QS = 1.4426950408889634 / (128 ** 0.5)
sQS = "s99"


def q_pack(p, a2):
    out = []
    for rt in range(4):
        t0, t1 = tile(p, 2 * a2, rt), tile(p, 2 * a2 + 1, rt)
        out += [f"v_mul_f32 v{t+k}, {sQS}, v{t+k}" for t in (t0, t1) for k in range(4)] + cvt4(t0, t0, t1)
    return out


def q_move(p, a2):
    out = []
    aa = 2 * int(p[1]) + a2
    for rt in range(4):
        t0 = tile(p, 2 * a2, rt)
        out += [f"v_accvgpr_write_b32 a{Q+16*rt+4*aa+k}, v{t0+k}" for k in range(4)]
        out.append(f"ds_write_b128 v{vSTW}, {v(t0,4)} offset:{(4*rt+aa)*1024}")
    return out


e.wvm("c0", "w0")
e.i("s_barrier")
now(c_reads(0) + ["s_waitcnt lgkmcnt(4)"] + w_reads(0, 0) + ["s_waitcnt lgkmcnt(0)"])
stamp(1)
mf, items, pins, full, labels = [], [], {}, {}, {}
NST = 28
for n in range(NST):
    G = 64 * n
    mf += stage_mfmas(n)
    for g in range(4):
        if g < 3:
            rdl = w_reads(n, g + 1)
        else:
            rdl = w_reads(n + 1, 0) if n + 1 < NST else []
        items += [Item(G + 16 * g + 1.5 * k, t, "tr", dl=G + 16 * g + 13) for k, t in enumerate(rdl)]
        if g != 2 and rdl:
            pins[G + 16 * g + 15] = "s_waitcnt lgkmcnt(0)"
    tags = [f"w{n+1}"] if n + 1 < NST else []
    if 15 <= n <= 18:
        tags += [f"x{2*(n-15)}", f"x{2*(n-15)+1}"]
    if n == 5:
        tags += ["xn", "zero"]
    full[G + 47] = [WVM(*tags, lgkm=True, cap=38), "s_barrier"]
    if n < 7:
        pins[G + 17] = WVM(f"c{n+1}")
        pre = []
        if (n + 1) % 3 == 2:
            pre = [f"v_add_u32 v{vCR[k]}, 65536, v{vCR[k]}" for k in range(2)]
        if (n + 1) % 3 == 0:
            pre = [f"v_subrev_u32 v{vCR[k]}, 65536, v{vCR[k]}" for k in range(2)]
        items += [Item(G + 14 + k, t, "cr") for k, t in enumerate(pre)]
        items += [Item(G + 18 + 3 * k, t, "cr", dl=G + 45) for k, t in enumerate(c_reads(n + 1))]
    dm = []
    if n + 3 < 8:
        dm += c_dma(n + 3)
    for m in range(4, NST):
        if (m - 3 if m <= 11 else (m - 4 if m <= 13 else m - 5)) == n:
            dm += w_dma(m)
    items += spread(dm, G, G + 58, "dma")
    if 13 <= n <= 16:
        items += spread(x_load(2 * (n - 13)) + x_load(2 * (n - 13) + 1), G, G + 60, "xl")
ln = ln_stream()
for k, (t, sep, cost) in enumerate(ln):
    items.append(Item(2 + k * 250.0 / len(ln), t, "ln", sep=sep))
items += spread([f"v_cmp_eq_u32 vcc, 0, {vLANE}", f"v_mov_b32 v{vTMP}, {HUGE}",
                 ("x", [f"s_cmp_eq_u32 {sW}, 0", f"s_cselect_b32 {T2}, 0, {HUGE}", f"v_cndmask_b32 v{vTMP}, v{vTMP}, 0, vcc",
                        VMop(f"buffer_atomic_add {vONE}, v{vTMP}, {SDBG}, {T2} offen sc1")])], 64 * 6, 64 * 6 + 8, "fl")
items += spread([f"v_mov_b32 {vFOFF}, 0", VMop(f"buffer_load_dword {vFLAG}, {vFOFF}, {SDBG}, 0 offen sc1", "init")], 64 * 10, 64 * 10 + 4, "fl")
items.append(mk(64 * 12 + 50, ("x", [lambda em: flag_check(em, "init", 256, SDBG)]), "fl", dl=64 * 13 - 1))
items += spread(n_src_ops(vOM, 3584, 233, 234), 64 * 8 + 20, 64 * 9 + 40, "ad", dl=64 * 11 - 1)
items += spread([("x", [f"s_and_b32 {T0}, {sW}, 1", f"s_lshl_b32 {T0}, {T0}, 14", f"s_add_u32 {T0}, {T0}, 131072",
                        f"s_cmp_lt_u32 {sW}, 2", f"s_cselect_b32 {T0}, {T0}, 0x30000", f"v_add_u32 v{vSTW}, {T0}, {vL16}"]),
                 f"s_mov_b32 {sQS}, {f32(QS)}"], 64 * 10 + 10, 64 * 10 + 20, "ad")
made = {}
for aa in range(4):
    for rt in range(4):
        its = spread(cvt4(Ls(4 * rt + aa), Ls(4 * rt + aa), Us(4 * rt + aa)), 64 * 7 + 16 * aa + 20 + 4 * rt, 64 * 7 + 16 * aa + 24 + 4 * rt, "pk", dl=64 * 12 - 3)
        made[("K", rt, aa)] = its[-1]
        items += its
for p, n0 in (("V0", 11), ("V1", 15)):
    for ct in range(4):
        for jj in range(2):
            its = spread(cvt4(tile(p, ct, 2 * jj), tile(p, ct, 2 * jj), tile(p, ct, 2 * jj + 1)), 64 * n0 + 16 * ct + 20 + 6 * jj, 64 * n0 + 16 * ct + 26 + 6 * jj, "pk")
            made[(p, jj, ct)] = its[-1]
            items += its
items += spread([f"v_lshrrev_b32 v{vTMP}, 4, {vLANE}", f"v_lshlrev_b32 v{vTMP}, 3, v{vTMP}", f"s_lshl_b32 {T3}, {sH}, 7"] +
                [VMop(f"buffer_load_dwordx2 {v(Cs(9 + 2*(ct >> 1)) + 2*(ct & 1), 2)}, v{vTMP}, {SB1}, {T3} offen offset:{32*ct}", "b1") for ct in range(4)],
                64 * 13 + 4, 64 * 13 + 40, "fl", after=[made[("V0", 1, 3)]])
ops = [("x", [WVM("b1")])]
for ct in range(4):
    for k in range(2):
        src = Cs(9 + 2 * (ct >> 1)) + 2 * (ct & 1) + k
        ops += [f"v_lshlrev_b32 v{Cs(2*ct+1)+2*k}, 16, v{src}", f"v_and_b32 v{Cs(2*ct+1)+2*k+1}, 0xffff0000, v{src}"]
items += spread(ops, 64 * 15, 64 * 15 + 20, "fl", dl=64 * 16 - 3)
for a2 in range(2):
    for rt in range(4):
        t0, t1 = tile("M", 2 * a2, rt), tile("M", 2 * a2 + 1, rt)
        ops = [f"v_max_f32 v{t+k}, 0, v{t+k}" for t in (t0, t1) for k in range(4)]
        ops += [f"v_mul_f32 v{t+k}, v{t+k}, v{t+k}" for t in (t0, t1) for k in range(4)]
        ops += cvt4(t0, t0, t1)
        p0 = 64 * 19 + 38 + 18 * (4 * a2 + rt)
        its = spread(ops, p0, p0 + 18, "pk")
        made[("M", rt, a2)] = its[-1]
        items += its
st_ops = []
for rt in range(4):
    st_ops.append((f"s_add_u32 {sTS}, {sKVT}, {(rt >> 1)*16384 + (rt & 1)*4096}", 64 * 16 - 3,
                   [(VMop(f"buffer_store_dwordx4 {v(Ls(4*rt+aa),4)}, {vL16}, {WS}, {sTS} offen offset:{aa*1024} sc1", "kv"), made[("K", rt, aa)]) for aa in range(4)]))
for p in ("V0", "V1"):
    for jj in range(2):
        st_ops.append((f"s_add_u32 {sTS}, {sKVT}, {jj*16384 + 8192 + int(p[1])*4096}", 64 * 20 - 3,
                       [(VMop(f"buffer_store_dwordx4 {v(tile(p, ct, 2*jj),4)}, {vL16}, {WS}, {sTS} offen offset:{ct*1024} sc1", "kv"), made[(p, jj, ct)]) for ct in range(4)]))
pos = 64 * 8 + 24.0
for so, dl, grp in st_ops:
    pos = max(pos, max(d.pos for _, d in grp) + 2)
    items.append(Item(pos - 1, so, "st"))
    for o, d in grp:
        items.append(Item(pos, o, "st", dl=dl))
        items[-1].after = [d]
        pos += 20
items += spread(flag_set_ops("kv", [f"s_lshl_b32 {T0}, {sH}, 7", f"s_lshl_b32 {T1}, {sI}, 4", f"s_add_u32 {T0}, {T0}, {T1}",
                                    f"s_lshl_b32 {T1}, {sW}, 2", f"s_add_u32 {T0}, {T0}, {T1}"]), 64 * 20 + 30, 64 * 20 + 34, "fl", after=[items[-1]])
pos = 0
for a2 in range(2):
    for rt in range(4):
        d = made[("M", rt, a2)]
        pos = max(pos + 16, d.pos + 2)
        if rt % 2 == 0:
            items.append(Item(pos - 1, f"s_add_u32 {sTS}, {sHST}, {(rt >> 1)*4096}", "st"))
        items.append(Item(pos, VMop(f"buffer_store_dwordx4 {v(tile('M', 2*a2, rt),4)}, {vL16}, {WS}, {sTS} offen offset:{((rt & 1)*2 + a2)*1024} sc1", "h"), "st"))
        items[-1].after = [d]
items += spread(flag_set_ops("h", [f"s_lshl_b32 {T0}, {sI}, 9", f"s_lshl_b32 {T1}, {sH}, 4", f"s_add_u32 {T0}, {T0}, {T1}",
                                   f"s_lshl_b32 {T1}, {sW}, 2", f"s_add_u32 {T0}, {T0}, {T1}", f"s_add_u32 {T0}, {T0}, {F_H}"]),
                64 * 26 + 4, 64 * 26 + 8, "fl", after=[items[-1]])
items += spread(flag_load_ops([f"s_lshl_b32 {T0}, {sH}, 7"], 32, "fkv"), 64 * 23 + 10, 64 * 23 + 20, "fl")
items.append(mk(64 * 24 + 50, ("x", [lambda em: flag_check(em, "fkv", 1)]), "fl", dl=64 * 25 - 1))
items += spread(t_set(-5) + t_set(-4), 64 * 25, 64 * 25 + 44, "dma")
items += spread(t_set(-3), 64 * 26, 64 * 26 + 44, "dma")
items += spread(q_pack("Q0", 0), 64 * 23 + 38, 64 * 24 + 14, "pk")
items += spread(q_pack("Q0", 1), 64 * 24 + 14, 64 * 24 + 60, "pk")
items += spread(q_move("Q0", 0) + q_move("Q0", 1), 64 * 25 + 2, 64 * 26 + 20, "pk")
items += spread([f"v_accvgpr_write_b32 a{ZERO+k}, 0" for k in range(4)], 64 * 26 + 22, 64 * 26 + 30, "pk")
items += spread(q_pack("Q1", 0), 64 * 27 + 36, 64 * 27 + 60, "pk")
for k, n in enumerate((8, 12, 16, 20, 24)):
    items += STAMPI(64 * n, 2 + k)
for k, n in enumerate((2, 4, 6, 13, 14, 15)):
    items += STAMPI(64 * n, 25 + k)
labels[64 * 20] = "L_q_start"
pack(e, mf, items, pins, full, "p12", opt["verbose"], labels)
stamp(7)

O, S, P, CM = 0, 128, [160, 176], 192
vBK, vBVL, vBVH, vAK, vAVL, vAVH, vNEG, vSTQ = 228, 229, 230, 231, 233, 234, 235, 236
vB0, vB1, vT = 238, 242, 224
POOL, L, ONES = 64, 96, 112


def pool(h, f): return a(POOL + 16 * h + 4 * f, 4)


qp, qm = q_pack("Q1", 1), q_move("Q1", 1)
setup = [f"v_mov_b32 v{vNEG}, {f32(-1e30)}", f"v_mov_b32 v{vT}, 0x3f803f80"] + [f"v_accvgpr_write_b32 a{ONES+k}, v{vT}" for k in range(4)] + [
    f"v_subrev_u32 v{vBK}, {sW4K}, {vL16}", f"v_mov_b32 v{vBVL}, v{vBK}", f"v_mov_b32 v{vBVH}, v{vBK}", f"v_mov_b32 v{vAK}, {vL16}",
    f"v_lshrrev_b32 v{vT}, 4, {vLANE}", f"v_lshlrev_b32 v{vT}, 2, v{vT}", f"v_and_b32 v{vT+1}, 15, {vLANE}", f"v_sub_u32 v{vT}, v{vT+1}, v{vT}",
    f"s_and_b32 {T0}, {sW}, 1", f"s_lshl_b32 {T0}, {T0}, 14", f"s_add_u32 {T0}, {T0}, 131072", f"v_add_u32 v{vSTQ}, {T0}, {vL16}"]
now(t_set(-2))
now([zero16(a(L, 16))] + q_move("Q1", 0) + setup)
for rt in range(4):
    e.i(zero16(v(32 * rt, 16)))
    now(qp[12 * rt:12 * rt + 12] + qm[5 * rt:5 * rt + 5])
for r in range(4):
    e.i(f"v_cmp_le_i32 {sTRI[r]}, {r}, v{vT}")
e.i(f"s_mov_b64 {sEV}, 0")
e.i(f"s_sub_u32 {T0}, {sTA}, 2")
e.i(f"s_bfm_b64 s[0:1], 5, {T0}")
e.i(f"s_cmp_lt_u32 {sW}, 2")
e.i(f"s_cselect_b64 {sEV}, {sEV}, s[0:1]")
e.i(f"s_cselect_b32 {sXD}, {sBLKB}, 0")
e.i(f"s_bitset1_b64 {sEV}, 32")
e.i(f"s_sub_u32 {T0}, {sLO}, 3")
e.i(f"s_max_i32 {T0}, {T0}, 0")
e.i(f"s_bitset1_b64 {sEV}, {T0}")
e.i(f"s_mov_b64 {sFAIL}, 0")
e.i(f"s_sub_u32 {T0}, 4, {sDEL}")
e.i(f"s_lshl_b32 {sGM}, {T0}, 14")
e.i(f"s_add_u32 {sGM}, {sGM}, {sKVH}")
e.i(f"s_mov_b32 {sDM}, 16384")
e.i(f"s_sub_u32 {T1}, 65, {T0}")
e.i(f"s_lshl_b32 {T1}, {T1}, 14")
e.i(f"s_add_u32 {T1}, {T1}, {sKVH}")
e.i(f"s_cmp_eq_u32 {sI}, 0")
e.i(f"s_cselect_b32 {sGT}, {T1}, {HUGE}")
e.i(f"s_cselect_b32 {sDT}, -16384, 0")
for k in range(4):
    e.i(zero16(v(32 * k + 16, 16)))
    e.i(f"v_mov_b32 v{vB0+k}, 0")
    e.i(f"v_mov_b32 v{vB1+k}, 0")
e.i(f"s_cmp_lg_u32 {sREDO}, 0")
e.i("s_cbranch_scc1 L_maxpass")
e.label("L_maxret")


def Sreg(kvt, qt): return S + 16 * kvt + 4 * qt


def cm_set(spec, base):
    out = []
    for (kvt, qt), ty in spec.items():
        b = CM + 16 * kvt + 4 * qt
        for r in range(4):
            if ty == "F":
                out.append(f"v_mov_b32 v{b+r}, v{base+qt}")
            elif ty == "N":
                out.append(f"v_mov_b32 v{b+r}, v{vNEG}")
            else:
                out.append(f"v_cndmask_b32 v{b+r}, v{vNEG}, v{base+qt}, {sTRI[r]}")
    return out


CM_ALL = {(k, q): "F" for k in range(2) for q in range(4)}
CM_E1 = {(0, 0): "T", (1, 0): "N", (1, 1): "T"}
CM_E2 = {(0, 0): "N", (0, 1): "N", (1, 1): "N", (1, 2): "N", (0, 2): "T", (1, 3): "T"}
CM_E3 = {(0, 2): "T", (0, 3): "F", (1, 3): "T"}
CM_E4 = {(0, 0): "T", (0, 1): "F", (1, 1): "T", (0, 2): "F", (1, 2): "F", (1, 3): "F"}
CM_E5 = {(0, 0): "F", (1, 0): "F", (1, 1): "F"}

now(cm_set(CM_ALL, vB0))
e.i(f"s_cmp_eq_u32 {sTA}, 2")
e.i("s_cbranch_scc1 L_pro_e1")
e.label("L_pro_e1r")
st = Em()
st.label("L_pro_e1")
now(cm_set(CM_E1, vB0) + ["s_branch L_pro_e1r"], st)
st.label("L_pro_e2")
now(["s_nop 2"] + cm_set(CM_E2, vB0) + ["s_branch L_pro_e2r"], st)
stubs.append(st)


def qk_mf(kvt):
    mf = []
    for qt in range(4):
        d = v(Sreg(kvt, qt), 4)
        for ds in range(4):
            mf.append(f"{MF} {d}, {pool(kvt, ds)}, {a(Q+16*qt+4*ds,4)}, {(v(CM+16*kvt+4*qt,4) if not opt['x_c0'] else '0') if ds == 0 else d}")
    return mf


def pv_mf(Pc):
    mf = []
    for pg in range(2):
        for f in range(4):
            for qt in range(4):
                d = v(O + 32 * qt + 4 * (4 * pg + f), 4) if not opt["x_oacc"] else a(128 + 32 * qt + 4 * (4 * pg + f), 4)
                mf.append(f"{MF} {d}, {pool(pg, f)}, {v(Pc+4*qt,4)}, {d}")
    for qt in range(4):
        d = a(L + 4 * qt, 4)
        mf.append(f"{MF} {d}, {a(ONES,4)}, {v(Pc+4*qt,4)}, {d}")
    return mf


def sm_seq(kvt, Pd):
    seq, pend = [], None
    for qt in range(4):
        for p in range(2):
            r = Sreg(kvt, qt) + 2 * p
            seq += [f"v_exp_f32 v{r}, v{r}", f"v_exp_f32 v{r+1}, v{r+1}"]
            if pend:
                seq.append(pend)
            pend = f"v_cvt_pk_bf16_f32 v{Pd+4*qt+2*kvt+p}, v{r}, v{r+1}"
    seq.append(pend)
    return seq


SPLIT = 13


def rd(half, va, imm):
    return [f"ds_read_b128 {pool(half, f)}, v{va} offset:{imm + f*1024}" for f in range(4)]


def spread_cost(seq, lo, hi, stream, dl=None):
    cost = [8 if t.startswith("v_exp") else 4 for t in seq]
    tot, acc, out = sum(cost), 0, []
    for c, t in zip(cost, seq):
        out.append(Item(lo + (hi - lo) * acc / tot, t, stream, dl))
        acc += c
    return out


def ring_dma(old, tag):
    mkv = lambda t: VMop(t, tag)
    return ([f"s_mov_b32 m0, {old}"] + [mkv(f"buffer_load_dwordx4 {vL16}, {WS}, {sGM} offen offset:{q*1024} sc1 lds") for q in range(4)] +
            ["s_add_u32 m0, m0, 16384", f"s_add_u32 {sGM}, {sGM}, {sDM}"] +
            [mkv(f"buffer_load_dwordx4 {vL16}, {WS}, {sGT} offen offset:{q*1024} sc1 lds") for q in range(4)] +
            [f"s_add_u32 {sGT}, {sGT}, {sDT}"])


e.i(f"s_mov_b32 {sMB}, {sW4K}")
e.i(f"s_add_u32 {sMA}, {sMB}, 32768")
e.wvm("T-2", lgkm=True)
e.i("s_barrier")
now(rd(0, vAK, 0) + [f"s_cmp_eq_u32 {sTA}, 2", "s_waitcnt lgkmcnt(0)"])
seq0 = sm_seq(0, P[0])
items = [Item(k, t, "rd") for k, t in enumerate(rd(1, vAK, 4096))] + spread_cost(seq0[:17], 12, 30, "sm")
pack(e, qk_mf(0) + qk_mf(1), items, {15: "s_waitcnt lgkmcnt(0)"},
     {31: [WVM("T-1"), "s_cbranch_scc1 L_pro_e2", lambda em: em.label("L_pro_e2r"), "s_barrier"]}, "p3pro")
e.i(f"v_add_u32 v{vAK}, {sMA}, v{vBK}")
e.i(f"v_add_u32 v{vAVL}, {sMA}, v{vBVL}")
now(rd(0, vAK, 0))
rest = seq0[17:] + sm_seq(1, P[0])[:SPLIT]
for k, o in enumerate(ring_dma(sMB, "T2")):
    e.do(o)
    now(rest[2 * k:2 * k + 2])
now(rest[2 * len(ring_dma(sMB, None)):])
e.i(f"s_mov_b32 {sN2}, 2")
e.i("s_waitcnt lgkmcnt(0)")
assert e.vm_n - e.vm_tag["T0"] >= 16 and e.vm_n - e.vm_tag["T1"] >= 8
stamp(8)


def step(n):
    Pc, Pn = P[n & 1], P[(n + 1) & 1]
    old, new = (sMA, sMB) if n % 2 == 0 else (sMB, sMA)
    mf = qk_mf(0) + qk_mf(1) + pv_mf(Pc)
    items = []
    for g, (half, va, imm) in enumerate([(1, vAK, 4096), (0, vAVL, 8192), (1, vAVH, 12288), (0, vAK, 0)]):
        items += [Item(16 * g + (2 * k if not opt["x_rd"] else k - 0.5), t, "rd", dl=16 * g + 11) for k, t in enumerate(rd(half, va, imm))]
    items += spread_cost(sm_seq(1, Pc)[SPLIT:], 0, 11, "sm1", dl=14)
    items += spread_cost(sm_seq(0, Pn), 12, 46, "sm0")
    items += spread_cost(sm_seq(1, Pn)[:SPLIT], 47, 64, "sm0")
    items.append(Item(10, f"s_add_u32 {new}, {old}, 32768", "ad"))
    items.append(Item(11, f"s_and_b32 {new}, {new}, 0x1ffff", "ad"))
    items.append(Item(13, f"v_add_u32 v{vAVH}, {new}, v{vBVH}", "ad", dl=29))
    items.append(Item(38, f"v_add_u32 v{vAK}, {new}, v{vBK}", "ad", dl=46))
    items.append(Item(42, f"v_add_u32 v{vAVL}, {new}, v{vBVL}", "ad"))
    items.append(Item(50, f"s_add_u32 {sN2}, {sN2}, 1", "ad"))
    dm = ring_dma(old, None)
    dm = [o.text if isinstance(o, VMop) else o for o in dm]
    ps = [32, 33, 37, 41, 45, 47, 48, 50, 54, 58, 62, 64]
    if opt["x_nodma"] == 1:
        dm = [o for o in dm if not o.startswith("buffer")]
    if opt["x_nodma"] == 2:
        dm = dm[:7]
    items += [Item(p, o, "dma") for p, o in zip(ps, dm)]
    if opt["x_noexp"]:
        items = [it for it in items if not str(it.stream).startswith("sm")]
    if opt["x_nord"]:
        items = [it for it in items if it.stream != "rd"]
    lab = "L_ev_even" if n % 2 == 0 else "L_ev_odd"
    pins = {15: "s_waitcnt lgkmcnt(0)", 47: "s_waitcnt lgkmcnt(0)", 30: f"s_bitcmp1_b64 {sEV}, {sN2}"}
    full = {31: ["s_waitcnt vmcnt(16) lgkmcnt(0)", f"s_cbranch_scc1 {lab}", lambda em: em.label(lab + "_r"), "s_barrier"]}
    if opt["x_nobar"]:
        full[31] = full[31][:-1]
    if n % 2 == 0:
        pins[67] = "s_waitcnt lgkmcnt(0)"
    else:
        full[67] = ["s_waitcnt lgkmcnt(0)", f"s_cmp_lt_u32 {sN2}, 34", "s_cbranch_scc1 L_att_loop"]
    if opt["stamps"] == 2:
        full[31] = ["s_memtime s[86:87]"] + full[31] + ["s_memtime s[0:1]", f"v_cmp_eq_u32 vcc, {sN2}, {vLANE}", "v_mov_b32 v248, s86",
                                                         "s_nop 0", "v_cndmask_b32 v246, v246, v248, vcc"]
        pins[47] = "s_waitcnt lgkmcnt(0)\nv_mov_b32 v248, s0\nv_cndmask_b32 v247, v247, v248, vcc"
    pack(e, mf, items, pins, full, f"p3step{n}", opt["verbose"], nos=(30,))


e.i(".p2align 6")
e.label("L_att_loop")
loop_a = len(e.lines)
step(0)
step(1)
loop_b = len(e.lines)

sR, sCc, sQ, sW8 = "s83", "s84", "s85", "s86"
sBT, sCT, sHB, sW2B, sAB, sWOB, sIP, sU0, sU1, sTILE = "s75", "s76", "s77", "s78", "s80", "s81", "s87", "s64", "s65", "s88"
vO2, vOO = [192, 193, 194, 195], [196, 197, 198, 199]
vT2 = [[200, 201], [202, 203], [204, 205]]
vTOr = [[206 + 2 * k, 207 + 2 * k] for k in range(5)]
vAR = [216, 217, 218]
tail_s = [
    f"s_bfe_u32 {sQ}, {sB}, 0x20001", f"s_bfe_u32 {sR}, {sB}, 0x30003", f"s_and_b32 {T0}, {sB}, 1", f"s_lshl_b32 {T0}, {T0}, 3",
    f"s_add_u32 {sR}, {sR}, {T0}", f"s_lshr_b32 {sCc}, {sB}, 6",
    f"s_lshr_b32 {T0}, {sQ}, 1", f"s_lshl_b32 {sBT}, {sR}, 1", f"s_add_u32 {sBT}, {sBT}, {T0}",
    f"s_and_b32 {T0}, {sQ}, 1", f"s_lshl_b32 {sCT}, {sCc}, 1", f"s_add_u32 {sCT}, {sCT}, {T0}",
    f"s_sub_u32 {T0}, 15, {sR}", f"s_min_u32 {sIP}, {T0}, {sR}",
    f"s_mul_i32 {T0}, {sW}, {7*32}", f"s_add_u32 {T0}, {T0}, {sBT}", f"s_lshl_b32 {sHB}, {T0}, 13", f"s_add_u32 {sHB}, {sHB}, {HH}",
    f"s_mul_i32 {sW2B}, {sW}, {7*65536}", f"s_lshl_b32 {T0}, {sCT}, 7", f"s_add_u32 {sW2B}, {sW2B}, {T0}"]
tail_s2 = [
    f"s_lshl_b32 {sAB}, {sQ}, 22", f"s_lshl_b32 {T0}, {sR}, 14", f"s_add_u32 {sAB}, {sAB}, {T0}", f"s_add_u32 {sAB}, {sAB}, {sW4K}",
    f"s_add_u32 {sAB}, {sAB}, {CTX}", f"s_lshl_b32 {sWOB}, {sQ}, 20", f"s_lshl_b32 {T0}, {sCc}, 8", f"s_add_u32 {sWOB}, {sWOB}, {T0}",
    f"s_lshl_b32 {T0}, {sW}, 14", f"s_add_u32 {sWOB}, {sWOB}, {T0}",
    f"s_lshl_b32 {T0}, {sR}, 2", f"s_add_u32 {T0}, {T0}, {sCc}", f"s_lshl_b32 {sTILE}, {T0}, 7"]
tA_, tB_, tC_, tD_ = 220, 221, 222, 223
o2_ops = [f"v_lshrrev_b32 v{tA_}, 5, {vLANE}", f"v_and_b32 v{tB_}, 3, {vLANE}", f"v_lshlrev_b32 v{tC_}, 1, v{tA_}", f"v_xor_b32 v{tB_}, v{tB_}, v{tC_}",
          f"v_lshlrev_b32 v{tA_}, 12, v{tA_}", f"v_lshl_add_u32 v{tA_}, v{tB_}, 4, v{tA_}", f"v_bfe_u32 v{tB_}, {vLANE}, 2, 2",
          f"v_lshl_add_u32 v{tA_}, v{tB_}, 10, v{tA_}", f"v_bfe_u32 v{tC_}, {vLANE}, 4, 1", f"v_lshl_add_u32 v{vO2[0]}, v{tC_}, 6, v{tA_}"] + \
         [f"v_add_u32 v{vO2[q]}, {q*7168}, v{vO2[0]}" for q in range(1, 4)]
oo_ops = [f"v_bfe_u32 v{tB_}, {vLANE}, 2, 2", f"v_lshlrev_b32 v{tA_}, 10, v{tB_}", f"v_lshrrev_b32 v{tC_}, 4, {vLANE}",
          f"v_lshl_add_u32 v{tA_}, v{tC_}, 6, v{tA_}", f"v_and_b32 v{tC_}, 3, {vLANE}", f"v_lshl_add_u32 v{vOO[0]}, v{tC_}, 4, v{tA_}",
          f"v_xor_b32 v{tC_}, 32, v{vOO[0]}", f"v_add_u32 v{vOO[1]}, 3072, v{tC_}", f"v_add_u32 v{vOO[2]}, 6144, v{vOO[0]}",
          f"v_add_u32 v{vOO[3]}, 9216, v{tC_}"]
t2_ops = inner_ops(tA_, tB_, 9, tC_, tD_) + [f"v_add_u32 v{vT2[0][k]}, {sW8}, v{(tA_, tB_)[k]}" for k in range(2)] + \
         [f"v_add_u32 v{vT2[m][k]}, {65536*m}, v{vT2[0][k]}" for m in (1, 2) for k in range(2)]
to_ops = inner_ops(tA_, tB_, 10, tC_, tD_) + [
    ("x", [f"s_and_b32 {T0}, {sW}, 1", f"s_lshl_b32 {T0}, {T0}, 9", f"s_add_u32 {T0}, {T0}, 16384",
           f"v_add_u32 v{vTOr[0][0]}, {T0}, v{tA_}", f"v_add_u32 v{vTOr[0][1]}, {T0}, v{tB_}"])] + \
    [f"v_add_u32 v{vTOr[k][c]}, {32768*k}, v{vTOr[0][c]}" for k in range(1, 5) for c in range(2)] + [
    ("x", [f"s_lshr_b32 {T0}, {sW}, 1", f"s_lshl_b32 {T0}, {T0}, 13", f"v_add_u32 v{vAR[0]}, {T0}, {vL16}"]),
    f"v_add_u32 v{vAR[1]}, 65536, v{vAR[0]}", f"v_add_u32 v{vAR[2]}, 131072, v{vAR[0]}"]

TACC, SACC = 64, 0
TBUF = [128, 160, 192, 224]
ABUF = [0, 32, 96]
TREG = [3, 4, 0, 1, 1, 3, 4]
UREG = [2, 3, 4, 0]


def t_w_dma(j):
    out = []
    for half in range(2):
        out += [f"s_add_u32 m0, {sW8}, {TREG[j]*32768 + half*4096}", f"s_add_u32 {sU0}, {sW2B}, {j*65536 + half*32768}"]
        out += [VMop(f"buffer_load_dwordx4 v{vO2[q]}, {SW2}, {sU0} offen offset:{q*1024} lds", f"tw{j}") for q in range(4)]
    return out


def t_a_load(j):
    out = []
    for half in range(2):
        out.append(f"s_add_u32 {sU1}, {sHB}, {j*262144 + half*4096}")
        out += [VMop(f"buffer_load_dwordx4 {a(TBUF[j%4] + 16*half + 4*q, 4)}, {vL16}, {WS}, {sU1} offen offset:{q*1024} sc1", f"ta{j}") for q in range(4)]
    return out


now(rd(0, vAVL, 8192))
e.i(f"s_add_u32 {sMB}, {sMA}, 32768")
e.i(f"s_and_b32 {sMB}, {sMB}, 0x1ffff")
e.i(f"v_add_u32 v{vAVH}, {sMB}, v{vBVH}")
now(tail_s[:14])
now(flag_load_ops([f"s_lshl_b32 {T0}, {sIP}, 9", f"s_add_u32 {T0}, {T0}, {F_H}"], 56, "fh", shift=3, dw=2))
now(sm_seq(1, P[0])[SPLIT:])
now(tail_s[14:] + [f"s_lshl_b32 {sW8}, {sW}, 13"])
e.i(f"s_cmp_eq_u32 {sTA}, 32")
e.i("s_waitcnt vmcnt(0) lgkmcnt(0)")
e.vm_done = e.vm_n
e.i("s_cbranch_scc1 L_ev_fin")
e.label("L_ev_fin_r")
e.i("s_barrier")
now(rd(1, vAVH, 12288))
now(o2_ops)
flag_check(e, "fh", 1, dw=2)
items = spread(t_w_dma(0) + t_a_load(0) + t_w_dma(1), 0, 30, "dma")
pack(e, pv_mf(P[0]), items, {15: "s_waitcnt lgkmcnt(0)"}, {}, "p3fin")
stamp(9)
if opt["stamps"] == 2:
    e.i(f"s_sub_u32 {T0}, {sST}, {STAMP}")
    e.i(f"s_lshl_b32 {T0}, {T0}, 2")
    e.i(f"s_add_u32 {T0}, {T0}, {STAMP + (1 << 20)}")
    e.i(f"v_lshlrev_b32 v248, 2, {vLANE}")
    e.vm(f"buffer_store_dword v246, v248, {WS}, {T0} offen")
    e.vm(f"buffer_store_dword v247, v248, {WS}, {T0} offen offset:256")

LHI, LLO = f32(2.0 ** 60), f32(2.0 ** -60)
vX = 228
e.i(f"s_lshl_b32 {T0}, {sW}, 14")
e.i(f"v_add_u32 v{vX}, {T0}, {vL16}")
e.i(f"s_xor_b32 {T0}, {T0}, 32768")
e.i(f"v_add_u32 v{vX+1}, {T0}, {vL16}")
e.i(f"s_lshl_b32 {T0}, {sW}, 10")
e.i(f"s_add_u32 {T0}, {T0}, 65536")
e.i(f"v_add_u32 v{vX+2}, {T0}, {vL16}")
e.i(f"s_xor_b32 {T0}, {T0}, 2048")
e.i(f"v_add_u32 v{vX+3}, {T0}, {vL16}")
e.i(f"v_mov_b32 v233, {65536 + 8}")
e.i(f"s_mov_b32 {T1}, {LHI}")
e.i(f"s_mov_b32 {T2}, {LLO}")
LR = S
for qt in range(4):
    e.i(f"v_accvgpr_read_b32 v{LR+qt}, a{L+4*qt}")
for qt in range(4):
    e.i(f"v_cmp_nge_f32 vcc, {T1}, v{LR+qt}")
    e.i("s_nop 0")
    e.i(f"s_or_b64 {sFAIL}, {sFAIL}, vcc")
e.i(f"s_lshl_b32 {T3}, {sH}, 6")
e.i(f"s_add_u32 {T3}, {T3}, {sBLKB}")
e.i(f"s_lshl_b32 {T3}, {T3}, 13")
e.i(f"s_add_u32 {T3}, {T3}, {CTX}")
e.i(f"s_cmp_ge_u32 {sW}, 2")
e.i("s_cbranch_scc1 L_fin_y")
save = (e.vm_n, dict(e.vm_tag), e.vm_done)
for role in range(2):
    keep = [0, 1] if role == 0 else [2, 3]
    send = [2, 3] if role == 0 else [0, 1]
    RX = O + 32 * send[0]
    if role == 1:
        e.label("L_fin_y")
        e.vm_n, e.vm_tag, e.vm_done = save[0], dict(save[1]), save[2]
    else:
        for qt in range(4):
            e.i(f"v_cmp_nle_f32 vcc, {T2}, v{LR+qt}")
            e.i("s_nop 0")
            e.i(f"s_or_b64 {sFAIL}, {sFAIL}, vcc")
    extra = t_a_load(1) + t_a_load(2)
    for k in range(16):
        if k == 12:
            e.i("s_waitcnt lgkmcnt(8)")
        e.i(f"ds_write_b128 v{vX}, {v(RX+4*k,4)} offset:{k*1024}")
        now(extra[(20 * k) // 16:(20 * (k + 1)) // 16])
    e.i(f"s_cmp_lg_u64 {sFAIL}, 0")
    e.i(f"s_cselect_b32 {T1}, 1, 0")
    if opt["forcefail"]:
        e.i(f"s_mov_b32 {T1}, 1")
    e.i(f"v_mov_b32 v{LR+4}, v{LR+send[0]}")
    e.i(f"v_mov_b32 v{LR+5}, v{LR+send[1]}")
    e.i(f"v_mov_b32 v{LR+6}, {T1}")
    e.i(f"v_mov_b32 v{LR+7}, 0")
    e.i(f"ds_write_b128 v{vX+2}, {v(LR+4,4)}")
    e.i("s_waitcnt lgkmcnt(0)")
    e.i("s_barrier")
    for w in range(4):
        e.i(f"ds_read_b32 v{LR+8+w}, v233 offset:{w*1024}")
    e.i(f"ds_read_b128 {v(LR+12,4)}, v{vX+3}")
    for k in range(10):
        e.i(f"ds_read_b128 {v(RX+4*k,4)}, v{vX+1} offset:{k*1024}")
    e.i("s_waitcnt lgkmcnt(10)")
    e.i(f"v_or_b32 v{LR+8}, v{LR+8}, v{LR+9}")
    e.i(f"v_or3_b32 v{LR+8}, v{LR+8}, v{LR+10}, v{LR+11}")
    for k in range(10, 15):
        e.i(f"ds_read_b128 {v(RX+4*k,4)}, v{vX+1} offset:{k*1024}")
    e.i(f"v_readfirstlane_b32 {T1}, v{LR+8}")
    e.i(f"v_add_f32 v{LR+16}, v{LR+keep[0]}, v{LR+12}")
    e.i(f"v_add_f32 v{LR+18}, v{LR+keep[1]}, v{LR+13}")
    e.i(f"s_andn2_b32 {T1}, {T1}, {sREDO}")
    e.i(f"s_cmp_lg_u32 {T1}, 0")
    e.i("s_cbranch_scc1 L_redo")
    e.i(f"v_rcp_f32 v{LR+16}, v{LR+16}")
    e.i(f"v_rcp_f32 v{LR+18}, v{LR+18}")
    e.i(f"s_add_u32 {T0}, {T3}, {keep[0]*2048}")
    e.i(f"s_add_u32 {T1}, {T0}, 262144")
    for k, qt in enumerate(keep):
        for aa in range(4):
            if k == 0 and aa == 0:
                e.i("s_waitcnt lgkmcnt(11)")
                e.i(f"ds_read_b128 {v(RX+60,4)}, v{vX+1} offset:{15*1024}")
            if k == 0 and aa == 2:
                e.i("s_waitcnt lgkmcnt(8)")
            if k == 1 and aa == 0:
                e.i("s_waitcnt lgkmcnt(0)")
                e.i("s_barrier")
            b = O + 32 * qt + 8 * aa
            for m in range(4):
                e.i(f"v_pk_add_f32 {v(b+2*m,2)}, {v(b+2*m,2)}, {v(RX+32*k+8*aa+2*m,2)}")
            for m in range(4):
                e.i(f"v_pk_mul_f32 {v(b+2*m,2)}, {v(b+2*m,2)}, {v(LR+16+2*k,2)} op_sel_hi:[1,0]")
            now(cvt4(b, b, b + 4))
            e.vm(f"buffer_store_dwordx4 {v(b,4)}, {vL16}, {WS}, {T0 if aa < 2 else T1} offen offset:{(2*k+(aa&1))*1024} sc1", "ctx")
    if role == 0:
        e.i("s_branch L_fin_done")
e.label("L_fin_done")
stamp(10)


def tr8(half, vpair, imm_fn):
    return [f"ds_read_b64_tr_b16 {a(POOL + 16*half + 4*(2*cI+ks) + 2*u, 2)}, v{vpair[cI]} offset:{imm_fn(ks, u)}"
            for cI in range(2) for ks in range(2) for u in range(2)]


def t_tr(j, g):
    reg = TREG[j]
    return tr8(g, vT2[reg // 2], lambda ks, u: (reg % 2) * 32768 + ks * 4096 + u * 2048 + g * 256)


def g64_mfmas(acc, buf, first):
    return [f"{MF} {v(acc + 16*rt + 4*(2*g+cI), 4)}, {pool(g, 2*cI+ks)}, {a(buf+8*rt+4*ks,4)}, {'0' if first and ks == 0 else v(acc + 16*rt + 4*(2*g+cI), 4)}"
            for g in range(2) for rt in range(4) for cI in range(2) for ks in range(2)]


def u_act(j, reg, tag):
    return [f"s_add_u32 m0, {sW4K}, {reg*32768}", f"s_add_u32 {sU0}, {sAB}, {j*262144}"] + \
           [VMop(f"buffer_load_dwordx4 {vL16}, {WS}, {sU0} offen offset:{q*1024} sc1 lds", tag) for q in range(4)]


def u_w(j):
    return [f"s_add_u32 m0, {sW4K}, {UREG[j%4]*32768 + 16384}", f"s_add_u32 {sU0}, {sWOB}, {j*65536}"] + \
           [VMop(f"buffer_load_dwordx4 v{vOO[q]}, {SWO}, {sU0} offen offset:{q*1024} lds", f"u{j}") for q in range(4)]


def u_dma(j):
    return u_w(j) + (u_act(j + 1, UREG[j % 4], f"u{j}") if j + 1 < 16 else [])


def s_tr(j, g):
    return tr8(g, vTOr[UREG[j % 4]], lambda ks, u: ks * 8192 + u * 4096 + g * 256)


def s_act_reads(j, reg):
    return [f"ds_read_b128 {a(ABUF[j%3] + 4*k, 4)}, v{vAR[reg//2]} offset:{(reg%2)*32768 + k*1024}" for k in range(8)]


def act0_load():
    out = [("x", [f"s_sub_u32 {T0}, {sAB}, {sW4K}", f"s_lshr_b32 {T2}, {sW}, 1", f"s_lshl_b32 {T2}, {T2}, 13", f"s_add_u32 {sU1}, {T0}, {T2}"])]
    out += [VMop(f"buffer_load_dwordx4 {a(ABUF[0]+4*k,4)}, {vL16}, {WS}, {sU1} offen offset:{k*1024} sc1", "a0") for k in range(4)]
    out.append(f"s_add_u32 {sU1}, {sU1}, 4096")
    out += [VMop(f"buffer_load_dwordx4 {a(ABUF[0]+16+4*k,4)}, {vL16}, {WS}, {sU1} offen offset:{k*1024} sc1", "a0") for k in range(4)]
    return out


now(t2_ops + tail_s2)
stamp(15)
e.wvm("tw0", "ta0")
stamp(16)
now(t_tr(0, 0))
now(t_w_dma(2) + t_w_dma(3) + t_a_load(3))
e.i("s_waitcnt lgkmcnt(0)")
mf, items, pins, full = [], [], {}, {}
for j in range(4):
    G = 32 * j
    mf += g64_mfmas(TACC, TBUF[j % 4], j == 0)
    items += [Item(G + 1.5 * k, t, "tr", dl=G + 13) for k, t in enumerate(t_tr(j, 1))]
    if j < 3:
        pins[G + 15] = WVM(f"tw{j+1}", f"ta{j+1}", lgkm=True)
        items += [Item(G + 16 + 1.5 * k, t, "tr", dl=G + 29) for k, t in enumerate(t_tr(j + 1, 0))]
    else:
        pins[G + 15] = "s_waitcnt lgkmcnt(0)"
    if j < 2:
        pins[G + 31] = "s_waitcnt lgkmcnt(0)"
items += spread(oo_ops + to_ops, 0, 40, "ad", dl=60)
items += spread(flag_set_ops("ctx", [f"s_lshr_b32 {T0}, {sH}, 3", f"s_lshl_b32 {T1}, {sI}, 2", f"s_add_u32 {T0}, {T0}, {T1}", f"s_lshl_b32 {T0}, {T0}, 7",
                                     f"s_and_b32 {T1}, {sH}, 7", f"s_lshl_b32 {T1}, {T1}, 4", f"s_add_u32 {T0}, {T0}, {T1}",
                                     f"s_lshl_b32 {T1}, {sW}, 2", f"s_add_u32 {T0}, {T0}, {T1}", f"s_add_u32 {T0}, {T0}, {F_CTX}"]), 28, 30, "fl")
items += spread(u_w(0), 62, 72, "dma")
items += spread(flag_load_ops([f"s_lshl_b32 {T0}, {sIP}, 2", f"s_add_u32 {T0}, {T0}, {sQ}", f"s_lshl_b32 {T0}, {T0}, 7",
                               f"s_add_u32 {T0}, {T0}, {F_CTX}"], 32, "fctx"), 74, 84, "fl", dl=93)
full[95] = ["s_waitcnt lgkmcnt(0)", "s_barrier", lambda em: stamp(19, em), lambda em: flag_check(em, "fctx", 1), lambda em: stamp(20, em)]
items += STAMPI(27, 17) + STAMPI(34, 18)
items += spread(act0_load() + u_act(1, UREG[0], "u0") + u_dma(1), 96, 122, "dma")
pack(e, mf, items, pins, full, "t1", opt["verbose"])
now(u_dma(2) + u_dma(3) + t_w_dma(4) + t_a_load(4))
stamp(21)
e.wvm("a0", "u0")
e.i("s_barrier")
now(s_tr(0, 0) + s_act_reads(1, UREG[0])[:4] + ["s_waitcnt lgkmcnt(0)"])
stamp(11)
mf, items, pins, full = [], [], {}, {}
for j in range(16):
    G = 32 * j
    mf += g64_mfmas(SACC, ABUF[j % 3], j == 0)
    items += [Item(G + k, t, "tr", dl=G + 13) for k, t in enumerate(s_tr(j, 1))]
    if j + 1 < 16:
        items += [Item(G + 8 + k, t, "tr", dl=G + 13) for k, t in enumerate(s_act_reads(j + 1, UREG[j % 4])[4:])]
        full[G + 15] = [WVM(f"u{j+1}", lgkm=True), "s_barrier"]
        items += [Item(G + 16 + k, t, "tr", dl=G + 29) for k, t in enumerate(s_tr(j + 1, 0))]
        if j + 2 < 16:
            items += [Item(G + 24 + k, t, "tr", dl=G + 29) for k, t in enumerate(s_act_reads(j + 2, UREG[(j + 1) % 4])[:4])]
    else:
        pins[G + 15] = WVM("tw4", "ta4", lgkm=True)
        items += [Item(G + 16 + k, t, "tr", dl=G + 29) for k, t in enumerate(t_tr(4, 0))]
    pins[G + 31] = "s_waitcnt lgkmcnt(0)"
    lst = []
    if j + 4 < 16:
        lst += u_dma(j + 4)
    if j == 13:
        lst += t_w_dma(5) + t_a_load(5)
    if j == 14:
        lst += t_w_dma(6) + t_a_load(6)
    items += spread(lst, G + 16, G + 46, "dma")
pack(e, mf, items, pins, full, "s", opt["verbose"])
stamp(12)
e.i(f"s_lshl_b32 {T1}, {sTILE}, 10")
e.i(f"s_lshl_b32 {T0}, {sW}, 15")
e.i(f"s_add_u32 {T1}, {T1}, {T0}")
e.i(f"s_lshl_b32 {T0}, {sQ}, 13")
e.i(f"s_add_u32 {T1}, {T1}, {T0}")
e.i(f"s_add_u32 {T1}, {T1}, {PART}")
e.i(f"s_cmp_eq_u32 {sW}, {sQ}")
e.i(f"s_cselect_b32 {T1}, {HUGE}, {T1}")
e.i(f"s_cselect_b32 {T0}, 1, 3")
e.i(f"s_lshl_b32 {T0}, {T0}, 16")
e.i(f"s_add_u32 {T2}, {T1}, 4096")
vXO, vB2O, vOWN, vTW, vTRD, vTRT = 128, 129, 130, 131, 132, 133
e.i(f"v_add_u32 v{vOWN}, {T0}, {vL16}")
PK = 136
for k in range(8):
    now(cvt4(PK + 4 * k, SACC + 8 * k, SACC + 8 * k + 4))
    e.vm(f"buffer_store_dwordx4 {v(PK+4*k,4)}, {vL16}, {WS}, {T1 if k < 4 else T2} offen offset:{(k%4)*1024} sc1", "part")
XW, BW = 168, 176
fin_ops = [f"v_and_b32 v{vXO}, 15, {vLANE}", f"v_lshlrev_b32 v{vXO}, 10, v{vXO}", f"v_lshrrev_b32 v{vB2O}, 4, {vLANE}",
           f"v_lshlrev_b32 v{vB2O}, 3, v{vB2O}", f"v_add_u32 v{vXO}, v{vXO}, v{vB2O}",
           ("x", [f"s_lshl_b32 {sAB}, {sBT}, 16", f"s_lshl_b32 {T0}, {sW}, 14", f"s_add_u32 {sAB}, {sAB}, {T0}",
                  f"s_lshl_b32 {sWOB}, {sCT}, 7", f"s_add_u32 {sAB}, {sAB}, {sWOB}"])]
fin_ops += [VMop(f"buffer_load_dwordx2 {v(XW+2*ct,2)}, v{vXO}, {SX}, {sAB} offen offset:{32*ct}", "fx") for ct in range(4)]
fin_ops += [VMop(f"buffer_load_dwordx2 {v(BW+2*ct,2)}, v{vB2O}, {SB2}, {sWOB} offen offset:{32*ct}", "fx") for ct in range(4)]
fin_ops += [("x", [f"s_lshl_b32 {T0}, {sW}, 14", f"s_add_u32 {T0}, {T0}, 81920", f"v_add_u32 v{vTW}, {T0}, {vL16}"]),
            ("x", [f"s_add_u32 {T0}, {sW4K}, 65536", f"v_add_u32 v{vTRD}, {T0}, {vL16}"]), f"v_add_u32 v{vTRT}, 16384, v{vTRD}"]
mf, items, pins, full = [], [], {}, {}
for j in range(4, 7):
    G = 32 * (j - 4)
    mf += g64_mfmas(TACC, TBUF[j % 4], False)
    items += [Item(G + 1.5 * k, t, "tr", dl=G + 13) for k, t in enumerate(t_tr(j, 1))]
    if j < 6:
        pins[G + 15] = WVM(f"tw{j+1}", f"ta{j+1}", lgkm=True)
        items += [Item(G + 16 + 1.5 * k, t, "tr", dl=G + 29) for k, t in enumerate(t_tr(j + 1, 0))]
        pins[G + 31] = "s_waitcnt lgkmcnt(0)"
    else:
        pins[G + 15] = "s_waitcnt lgkmcnt(0)"
items += spread(fin_ops, 0, 40, "ad")
items += spread([f"ds_write_b128 v{vOWN}, {v(SACC+4*k,4)} offset:{k*1024}" for k in range(16)], 2, 60, "own")
items += spread(flag_set_ops("part", [f"s_lshl_b32 {T0}, {sQ}, 4", f"s_lshl_b32 {T1}, {sW}, 2", f"s_add_u32 {T0}, {T0}, {T1}",
                                      f"s_add_u32 {T0}, {T0}, {sTILE}", f"s_add_u32 {T0}, {T0}, {F_PART}"]), 50, 54, "fl")
items += spread(flag_load_ops([f"s_lshl_b32 {T0}, {sQ}, 2", f"s_add_u32 {T0}, {T0}, {sTILE}", f"s_add_u32 {T0}, {T0}, {F_PART}"],
                              4, "fpart", shift=4), 84, 94, "fl")
pack(e, mf, items, pins, full, "t2", opt["verbose"])
stamp(13)
e.i("s_barrier")
e.i("s_nop 3")
for k in range(16):
    if k == 12:
        e.i("s_waitcnt lgkmcnt(8)")
    e.i(f"ds_write_b128 v{vTW}, {v(TACC+4*k,4)} offset:{k*1024}")
stamp(22)
flag_check(e, "fpart", 1)
stamp(23)
e.i(f"s_lshl_b32 {T1}, {sTILE}, 10")
e.i(f"s_lshl_b32 {T0}, {sQ}, 15")
e.i(f"s_add_u32 {T1}, {T1}, {T0}")
e.i(f"s_lshr_b32 {T0}, {sW4K}, 1")
e.i(f"s_add_u32 {T1}, {T1}, {T0}")
e.i(f"s_add_u32 {T1}, {T1}, {PART}")
for p in range(1, 4):
    e.i(f"s_add_u32 {T0}, {sQ}, {p}")
    e.i(f"s_and_b32 {T0}, {T0}, 3")
    e.i(f"s_lshl_b32 {T0}, {T0}, 13")
    e.i(f"s_add_u32 {T0}, {T0}, {T1}")
    for k in range(2):
        e.vm(f"buffer_load_dwordx4 {v(PK+8*(p-1)+4*k,4)}, {vL16}, {WS}, {T0} offen offset:{k*1024} sc1", f"sp{p}")
e.i("s_waitcnt lgkmcnt(0)")
e.i("s_barrier")
TR = 64
for p in range(4):
    for ct in range(4):
        if p == 3 and ct == 0:
            e.i("s_waitcnt lgkmcnt(8)")
        e.i(f"ds_read_b128 {v(TR+16*p+4*ct,4)}, v{vTRT} offset:{p*16384 + ct*1024}")
e.i("s_waitcnt lgkmcnt(8)")
for ct in range(4):
    e.i(f"ds_read_b128 {v(4*ct,4)}, v{vTRD} offset:{ct*1024}")
stamp(24)
e.wvm("fx")
for k in range(8):
    e.i(f"v_lshlrev_b32 v{16+2*k}, 16, v{BW+k}")
    e.i(f"v_and_b32 v{17+2*k}, 0xffff0000, v{BW+k}")
    e.i(f"v_lshlrev_b32 v{32+2*k}, 16, v{XW+k}")
    e.i(f"v_and_b32 v{33+2*k}, 0xffff0000, v{XW+k}")
e.i("s_waitcnt lgkmcnt(4)")
for k in range(8):
    e.i(f"v_pk_add_f32 {v(TR+2*k,2)}, {v(TR+2*k,2)}, {v(TR+16+2*k,2)}")
    e.i(f"v_pk_add_f32 {v(TR+32+2*k,2)}, {v(TR+32+2*k,2)}, {v(TR+48+2*k,2)}")
for k in range(8):
    e.i(f"v_pk_add_f32 {v(TR+2*k,2)}, {v(TR+2*k,2)}, {v(16+2*k,2)}")
for k in range(8):
    e.i(f"v_pk_add_f32 {v(TR+2*k,2)}, {v(TR+2*k,2)}, {v(TR+32+2*k,2)}")
for k in range(16):
    e.i(f"v_mul_f32 v{16+k}, {f32(-1.4426950408889634)}, v{TR+k}")
for k in range(16):
    e.i(f"v_exp_f32 v{16+k}, v{16+k}")
for k in range(16):
    e.i(f"v_add_f32 v{16+k}, 1.0, v{16+k}")
for k in range(16):
    e.i(f"v_rcp_f32 v{16+k}, v{16+k}")
e.i("s_waitcnt lgkmcnt(0)")
for k in range(8):
    e.i(f"v_pk_mul_f32 {v(TR+2*k,2)}, {v(TR+2*k,2)}, {v(16+2*k,2)}")
for p in range(1, 4):
    e.wvm(f"sp{p}")
    for k in range(8):
        e.i(f"v_lshlrev_b32 v{16+2*k}, 16, v{PK+8*(p-1)+k}")
        e.i(f"v_and_b32 v{17+2*k}, 0xffff0000, v{PK+8*(p-1)+k}")
    for k in range(8):
        e.i(f"v_pk_add_f32 {v(2*k,2)}, {v(2*k,2)}, {v(16+2*k,2)}")
for k in range(16):
    e.i(f"v_fma_f32 v{k}, v{k}, v{TR+k}, v{32+k}")
for k in range(8):
    e.i(f"v_cvt_pk_bf16_f32 v{16+k}, v{2*k}, v{2*k+1}")
for ct in range(4):
    e.vm(f"buffer_store_dwordx2 {v(16+2*ct,2)}, v{vXO}, {SOUT}, {sAB} offen offset:{32*ct}")
stamp(14)
e.wvm_all()
e.label("L_exit")
e.i("s_endpgm")
main_end = len(e.lines)

h = Em()


def a_final(em):
    R = [vT, vT + 1, vT + 2, vT + 3]
    em.i(f"s_mov_b32 {T1}, {LHI}")
    em.i(f"s_mov_b32 {T2}, {LLO}")
    for qt in range(4):
        em.i(f"v_accvgpr_read_b32 v{R[qt]}, a{L+4*qt}")
    em.i(f"s_lshl_b32 {T0}, {sH}, 6")
    em.i(f"s_add_u32 {T0}, {T0}, {sBLK0}")
    em.i(zero16(a(L, 16)))
    for qt in range(4):
        em.i(f"v_cmp_nge_f32 vcc, {T1}, v{R[qt]}")
        em.i(f"v_cmp_nle_f32 s[0:1], {T2}, v{R[qt]}")
        em.i(f"v_rcp_f32 v{R[qt]}, v{R[qt]}")
        em.i(f"s_or_b64 {sFAIL}, {sFAIL}, vcc")
        em.i(f"s_or_b64 {sFAIL}, {sFAIL}, s[0:1]")
    em.i(f"s_lshl_b32 {T0}, {T0}, 13")
    em.i(f"s_add_u32 {T0}, {T0}, {CTX}")
    em.i(f"s_add_u32 {T1}, {T0}, 262144")
    for qt in range(4):
        if qt == 2:
            em.i(f"s_add_u32 {T0}, {T0}, 4096")
            em.i(f"s_add_u32 {T1}, {T1}, 4096")
        for aa in range(4):
            b = O + 32 * qt + 8 * aa
            for m in range(8):
                em.i(f"v_mul_f32 v{b+m}, v{b+m}, v{R[qt]}")
                if m == 1 and aa % 2 == 0 and b >= 16:
                    em.i(zero16(v(b - 16, 16)))
            now(cvt4(b, b, b + 4), em)
            em.i(f"buffer_store_dwordx4 {v(b,4)}, {vL16}, {WS}, {T0 if aa < 2 else T1} offen offset:{(2*(qt&1)+(aa&1))*1024} sc1")
    em.i("s_nop 1")
    em.i(zero16(v(O + 112, 16)))
    em.i("s_nop 7")


h.label("L_ev_even")
h.i(f"s_sub_u32 {T0}, {sN2}, {sTA}")
h.i(f"s_cmp_eq_u32 {T0}, 0")
h.i("s_cbranch_scc1 L_e3")
h.i(f"s_cmp_eq_u32 {T0}, 2")
h.i("s_cbranch_scc1 L_e5")
h.i(f"s_cmp_eq_u32 {T0}, -2")
h.i("s_cbranch_scc0 L_c2")
h.label("L_e1")
now(cm_set(CM_E1, vB0) + ["s_branch L_ev_even_r"], h)
h.label("L_e3")
for k in range(16):
    if k == 12:
        now(cm_set(CM_E3, vB1) + [f"v_add_u32 v{vBK}, 16384, v{vBK}", "s_waitcnt lgkmcnt(4)"], h)
    h.i(f"ds_read_b128 {a(Q+4*k,4)}, v{vSTQ} offset:{k*1024}")
h.i(f"s_cmp_eq_u32 {sN2}, 32")
h.i("s_cbranch_scc0 L_ev_even_r")
h.label("L_c2")
h.i(f"s_mov_b32 {sGM}, {HUGE}")
h.i(f"s_mov_b32 {sGT}, {HUGE}")
h.i(f"s_mov_b32 {sDM}, 0")
h.i(f"s_mov_b32 {sDT}, 0")
h.i(f"s_cmp_eq_u32 {sXD}, 16")
h.i("s_cbranch_scc0 L_ev_even_r")
h.i("s_branch L_e1")
h.label("L_e5")
now(cm_set(CM_E5, vB1), h)
a_final(h)
h.i(f"s_cmp_eq_u32 {sN2}, 32")
h.i("s_cbranch_scc0 L_ev_even_r")
h.i("s_branch L_c2")
h.label("L_ev_odd")
h.i(f"s_sub_u32 {T0}, {sN2}, {sTA}")
h.i(f"s_cmp_eq_u32 {T0}, 1")
h.i("s_cbranch_scc1 L_e4")
h.i(f"s_cmp_eq_u32 {T0}, -1")
h.i("s_cbranch_scc0 L_c1")
now(cm_set(CM_E2, vB0) + ["s_branch L_ev_odd_r"], h)
h.label("L_e4")
now(cm_set(CM_E4, vB1) + [f"v_add_u32 v{vBVL}, 16384, v{vBVL}", f"v_add_u32 v{vBVH}, 16384, v{vBVH}", "s_branch L_ev_odd_r"], h)
h.label("L_c1")
h.i(f"s_sub_u32 {T0}, {sDEL}, {sLO}")
h.i(f"s_add_u32 {T0}, {T0}, 65")
h.i(f"s_lshl_b32 {T0}, {T0}, 14")
h.i(f"s_add_u32 {sGT}, {T0}, {sKVH}")
h.i(f"s_mov_b32 {sDT}, -16384")
h.i("s_branch L_ev_odd_r")
h.label("L_ev_fin")
a_final(h)
h.i("s_branch L_ev_fin_r")

h.label("L_redo")
h.i(f"s_mov_b32 {sREDO}, 1")
h.i("s_waitcnt vmcnt(0) lgkmcnt(0)")
h.i("s_barrier")
now(sc_ops + [f"s_mov_b32 {sHST}, {HUGE}", f"s_mov_b32 {sTS}, {HUGE}", f"s_mov_b32 {sQS}, {f32(QS)}"], h)
now(tn_ops(2, 3, 4, 5) + n_src_ops(vON, 8192, 2, 3), h)
now([f"s_and_b32 {T0}, {sW}, 1", f"s_lshl_b32 {T0}, {T0}, 14", f"s_add_u32 {T0}, {T0}, 131072", f"s_cmp_lt_u32 {sW}, 2",
     f"s_cselect_b32 {T0}, {T0}, 0x30000", f"v_add_u32 v{vSTW}, {T0}, {vL16}"], h)
for n in range(20, 25):
    now(w_dma(n), h)
h.i("s_waitcnt vmcnt(0)")
for j in range(8):
    if j == 4:
        h.i("s_waitcnt vmcnt(0)")
    now(x_load(j), h)
h.i("s_waitcnt vmcnt(0)")
h.i("s_barrier")
now(w_reads(20, 0) + ["s_waitcnt lgkmcnt(0)", "s_branch L_q_start"], h)

h.label("L_maxpass")
h.i("s_waitcnt vmcnt(0) lgkmcnt(0)")
h.i("s_barrier")
for k in range(64):
    h.i(f"v_accvgpr_mov_b32 a{128+k}, a{Q+k}")
h.i(f"s_mov_b32 {sMA}, 0")
h.i(f"s_mov_b32 {sMB}, {sBLK0}")
h.label("L_mp_pass")
MX = P[0]
ZV = P[0] + 4
for qt in range(4):
    h.i(f"v_mov_b32 v{MX+qt}, v{vNEG}")
    h.i(f"v_mov_b32 v{ZV+qt}, 0")
now(cm_set(CM_ALL, ZV), h)
h.i(f"s_mov_b32 {sN2}, 0")
h.label("L_mp_loop")
h.i(f"s_lshl_b32 {T1}, {sN2}, 14")
h.i(f"s_add_u32 {T1}, {T1}, {sKVH}")
h.i(f"s_sub_u32 {T1}, {T1}, {sW4K}")
h.i(f"s_add_u32 {T2}, {T1}, 4096")
for k in range(8):
    h.i(f"buffer_load_dwordx4 {a(POOL+4*k,4)}, {vL16}, {WS}, {T1 if k < 4 else T2} offen offset:{(k%4)*1024} sc1")
h.i(f"s_lshl_b32 {T0}, {sMB}, 1")
h.i(f"s_sub_u32 {T0}, {sN2}, {T0}")
h.i(f"s_cmp_eq_u32 {T0}, 0")
h.i("s_cbranch_scc0 L_mp_1")
now(cm_set(CM_E1, ZV), h)
h.label("L_mp_1")
h.i(f"s_cmp_eq_u32 {T0}, 1")
h.i("s_cbranch_scc0 L_mp_2")
now(cm_set(CM_E2, ZV), h)
h.label("L_mp_2")
h.i("s_waitcnt vmcnt(0)")
h.i("s_nop 0")
now(qk_mf(0) + qk_mf(1), h)
h.i("s_nop 7")
for qt in range(4):
    for kvt in range(2):
        b = Sreg(kvt, qt)
        h.i(f"v_max3_f32 v{MX+qt}, v{MX+qt}, v{b}, v{b+1}")
        h.i(f"v_max3_f32 v{MX+qt}, v{MX+qt}, v{b+2}, v{b+3}")
h.i(f"s_add_u32 {sN2}, {sN2}, 1")
h.i(f"s_lshl_b32 {T0}, {sMB}, 1")
h.i(f"s_add_u32 {T0}, {T0}, 2")
h.i(f"s_cmp_lt_u32 {sN2}, {T0}")
h.i("s_cbranch_scc1 L_mp_loop")
for x in (16, 32):
    h.i(f"v_xor_b32 v{vT}, {x}, {vLANE}")
    h.i(f"v_lshlrev_b32 v{vT}, 2, v{vT}")
    for qt in range(4):
        h.i(f"ds_bpermute_b32 v{ZV+qt}, v{vT}, v{MX+qt}")
    h.i("s_waitcnt lgkmcnt(0)")
    for qt in range(4):
        h.i(f"v_max_f32 v{MX+qt}, v{MX+qt}, v{ZV+qt}")
h.i(f"s_cmp_lg_u32 {sMA}, 0")
h.i("s_cbranch_scc1 L_mp_second")
for qt in range(4):
    h.i(f"v_sub_f32 v{vB0+qt}, 0, v{MX+qt}")
for k in range(16):
    if k == 12:
        h.i("s_waitcnt lgkmcnt(0)")
    h.i(f"ds_read_b128 {a(Q+4*k,4)}, v{vSTQ} offset:{k*1024}")
h.i("s_waitcnt lgkmcnt(0)")
h.i(f"s_mov_b32 {sMA}, 1")
h.i(f"s_mov_b32 {sMB}, {sBLKB}")
h.i("s_branch L_mp_pass")
h.label("L_mp_second")
for qt in range(4):
    h.i(f"v_sub_f32 v{vB1+qt}, 0, v{MX+qt}")
for k in range(64):
    h.i(f"v_accvgpr_mov_b32 a{Q+k}, a{128+k}")
h.i("s_branch L_maxret")

errs = check_hazards(e.lines[:main_end], "main")
errs += check_hazards(e.lines[loop_a:loop_b] + e.lines[loop_a:loop_b], "loop")
errs += check_hazards(h.lines, "ool")
for x in errs:
    print("HAZARD", x, file=sys.stderr)

out = [f"; @launch grid=(256,1,1) block=(256,1,1) lds=163840", '.amdgcn_target "amdgcn-amd-amdhsa--gfx950"', ".text",
       f".globl {NAME}_kernel", ".p2align 8", f".type {NAME}_kernel,@function", f"{NAME}_kernel:"]
for st in [e, h] + stubs:
    out += [("    " + l if not l.endswith(":") else l) for l in st.lines]
out.append(f""".section .rodata,"a"
.p2align 6
.amdhsa_kernel {NAME}_kernel
  .amdhsa_next_free_vgpr 512
  .amdhsa_next_free_sgpr 102
  .amdhsa_accum_offset 256
  .amdhsa_group_segment_fixed_size 0
  .amdhsa_kernarg_size 112
  .amdhsa_user_sgpr_count 2
  .amdhsa_user_sgpr_kernarg_segment_ptr 1
  .amdhsa_system_sgpr_workgroup_id_x 1
.end_amdhsa_kernel""")
open(opt["out"], "w").write("\n".join(out) + "\n")
print(f"wrote {opt['out']}: {len(out)} lines, {len(errs)} hazards", file=sys.stderr)
```

```python
import re, sys

TRANS = ("v_exp_f32", "v_log_f32", "v_rcp_f32", "v_rsq_f32", "v_sqrt_f32")


class Em:
    def __init__(self):
        self.lines = []
        self.vm_n = 0
        self.vm_tag = {}
        self.vm_done = 0

    def i(self, text):
        for t in text.split("\n"):
            t = t.strip()
            if t:
                self.lines.append(t)

    def c(self, text):
        self.lines.append("; " + text)

    def label(self, name):
        self.lines.append(name + ":")

    def vm(self, text, tag=None):
        self.lines.append(text)
        self.vm_n += 1
        if self.vm_n - self.vm_done > 63 and getattr(self, "strict", False):
            print("VMCNT overflow risk at", text, file=sys.stderr)
        if tag is not None:
            self.vm_tag[tag] = self.vm_n

    def wvm(self, *tags, lgkm=False, cap=63):
        idx = max([self.vm_tag[t] for t in tags] + [0, self.vm_n - cap])
        if idx <= self.vm_done:
            if lgkm:
                self.lines.append("s_waitcnt lgkmcnt(0)")
            return False
        n = min(self.vm_n - idx, 63)
        self.lines.append(f"s_waitcnt vmcnt({n})" + (" lgkmcnt(0)" if lgkm else ""))
        self.vm_done = max(self.vm_done, self.vm_n - n)
        return True

    def wvm_all(self):
        self.lines.append("s_waitcnt vmcnt(0)")
        self.vm_done = self.vm_n

    def covered(self, tag):
        return self.vm_tag[tag] <= self.vm_done

    def do(self, obj):
        if callable(obj):
            obj(self)
        else:
            self.i(obj)


def WVM(*tags, lgkm=False, cap=63):
    return lambda e: e.wvm(*tags, lgkm=lgkm, cap=cap)


def kind_of(t):
    m = t.split()[0]
    if m.startswith("buffer_") or m.startswith("global_"):
        return "D", 12
    if m.startswith("ds_write"):
        return "D", 12
    if m.startswith("ds_"):
        return "d", 4
    if m.startswith("v_"):
        return "v", (8 if any(m.startswith(x) for x in TRANS) else 4)
    return "s", 4


class VMop:
    def __init__(self, text, tag=None):
        self.text, self.tag = text, tag

    def __call__(self, e):
        e.vm(self.text, self.tag)


class Item:
    __slots__ = ("pos", "kind", "cost", "obj", "stream", "dl", "sep", "after", "g")

    def __init__(self, pos, obj, stream=None, dl=None, sep=0, kind=None, cost=None):
        self.pos, self.obj, self.stream, self.dl, self.sep = pos, obj, stream, dl, sep
        self.after, self.g = [], None
        if kind is None:
            if isinstance(obj, VMop):
                kind, cost = "D", 12
            elif isinstance(obj, str) and "\n" not in obj:
                k, c = kind_of(obj)
                kind, cost = k, (c if cost is None else cost)
            elif isinstance(obj, str):
                ks = [kind_of(x) for x in obj.split("\n")]
                assert all(k == "s" for k, _ in ks), obj
                kind, cost = "s", 4 * len(ks)
            else:
                raise ValueError("kind needed")
        self.kind, self.cost = kind, cost


RANK = {"s": 0, "d": 1, "v": 2, "D": 3}


def pack(em, mf, items, pins=None, full=None, name="", verbose=False, labels=None, nos=()):
    pins, full, labels = pins or {}, full or {}, labels or {}
    N = len(mf)
    sfree = [True] * N
    bud = [8] * N
    gaps = [[] for _ in range(N)]
    for g in pins:
        sfree[g] = False
    for g in full:
        sfree[g] = False
        bud[g] = 0
    last = {}
    over = 0

    def order_ok(g, it):
        return all(RANK[o.kind] <= RANK[it.kind] for o in gaps[g] if o.stream == it.stream and it.stream is not None)

    def fits(g, it):
        if g in full or not order_ok(g, it) or (g in nos and it.kind in "sD"):
            return False
        if it.kind == "D":
            return sfree[g] and bud[g] == 8
        if it.kind == "s":
            need = it.cost - (4 if sfree[g] else 0)
            return bud[g] >= need and (bud[g] > 0 or need == 0) and not any(o.kind == "D" for o in gaps[g])
        return bud[g] >= it.cost

    for it in sorted(items, key=lambda x: x.pos):
        g = max(0, int(it.pos))
        if it.stream is not None and it.stream in last:
            g = max(g, last[it.stream] + it.sep)
        for d in it.after:
            assert d.g is not None, (name, "dependency placed later", it.obj, d.obj)
            g = max(g, d.g + 1)
        dl = N - 1 if it.dl is None else min(it.dl, N - 1)
        assert g <= dl, (name, "cannot meet deadline", it.obj, g, dl)
        g0 = g
        while g <= dl and not fits(g, it):
            g += 1
        if g > dl:
            cand = [x for x in range(g0, dl + 1) if x not in full and order_ok(x, it) and not (x in nos and it.kind in "sD")]
            assert cand, (name, it.obj)
            g = max(cand, key=lambda x: (bud[x] + (4 if sfree[x] else 0), -x))
            over += 1
        if it.kind == "D":
            bud[g] -= 8 + (0 if sfree[g] else 4)
            sfree[g] = False
        elif it.kind == "s":
            bud[g] -= it.cost - (4 if sfree[g] else 0)
            sfree[g] = False
        else:
            bud[g] -= it.cost
        gaps[g].append(it)
        it.g = g
        if it.stream is not None:
            last[it.stream] = g
    excess = sum(-c for c in bud if c < 0)
    if verbose or over:
        print(f"[pack {name}] N={N} overflow_items={over} excess_cycles={excess} free={sum(c for c in bud if c > 0)}", file=sys.stderr)
    for k in range(N):
        if k in labels:
            em.label(labels[k])
        em.i(mf[k])
        if k in pins:
            em.do(pins[k])
        for o in full.get(k, []):
            em.do(o)
        for it in sorted(gaps[k], key=lambda x: RANK[x.kind]):
            em.do(it.obj)


_REG = re.compile(r"\b([vas])(\d+)\b|\b([vas])\[(\d+):(\d+)\]")


def regs(op):
    out = set()
    for m in _REG.finditer(op):
        if m.group(1):
            out.add((m.group(1), int(m.group(2))))
        else:
            for r in range(int(m.group(4)), int(m.group(5)) + 1):
                out.add((m.group(3), r))
    if re.search(r"\bvcc\b", op):
        out.add(("s", "vcc"))
    if re.search(r"\bm0\b", op):
        out.add(("s", "m0"))
    if re.search(r"\bexec\b", op):
        out.add(("s", "exec"))
    return out


def parse(line):
    s = line.split(";")[0].strip()
    if not s or s.endswith(":") or s.startswith("."):
        return None
    parts = s.split(None, 1)
    mn = parts[0]
    ops = [o.strip() for o in parts[1].split(",")] if len(parts) > 1 else []
    d = dict(mn=mn, w=set(), r=set(), kind="other", line=s, states=1)
    if mn == "s_nop":
        d["states"] = int(ops[0]) + 1
        return d
    if mn.startswith("v_mfma"):
        d["kind"] = "mfma"
        d["w"] = regs(ops[0]); d["A"] = regs(ops[1]); d["B"] = regs(ops[2]); d["C"] = regs(ops[3])
        d["r"] = d["A"] | d["B"] | d["C"]
        d["passes"] = 4 if "16x16" in mn else 8
        return d
    if mn.startswith("buffer_") or mn.startswith("global_"):
        d["kind"] = "vmem"
        lds = s.endswith(" lds") or " lds " in s
        if mn.startswith("buffer_load") and lds:
            d["r"] = regs(",".join(ops)) | {("s", "m0")}
            d["dma"] = True
        elif "load" in mn:
            d["w"] = regs(ops[0]); d["r"] = regs(",".join(ops[1:]))
        elif mn in ("buffer_inv", "buffer_wbl2"):
            pass
        else:
            d["r"] = regs(",".join(ops))
            if mn.endswith("x4") or mn.endswith("x3"):
                d["sdata"] = regs(ops[0])
        return d
    if mn.startswith("ds_"):
        d["kind"] = "ds"
        if mn.startswith("ds_read") or mn.startswith("ds_bpermute") or mn.startswith("ds_swizzle"):
            d["w"] = regs(ops[0]); d["r"] = regs(",".join(ops[1:]))
        else:
            d["r"] = regs(",".join(ops))
        return d
    if mn.startswith("v_"):
        d["kind"] = "valu"
        if mn.startswith("v_cmp"):
            d["w"] = regs(ops[0]); d["r"] = regs(",".join(ops[1:]))
        elif mn.startswith("v_permlane"):
            d["w"] = regs(ops[0]) | regs(ops[1]); d["r"] = set(d["w"]); d["perm"] = True
        elif mn.startswith("v_readfirstlane") or mn.startswith("v_readlane"):
            d["w"] = regs(ops[0]); d["r"] = regs(",".join(ops[1:])); d["rl"] = True
        else:
            d["w"] = regs(ops[0]); d["r"] = regs(",".join(ops[1:]))
            if mn.startswith("v_fmac") or mn.startswith("v_dot2c"):
                d["r"] |= d["w"]
        if "dpp" in mn or "row_" in s:
            d["dpp"] = True
            d["r"] |= d["w"]
        d["trans"] = any(mn.startswith(t) for t in TRANS)
        return d
    if mn.startswith("s_"):
        d["kind"] = "salu"
        if mn.startswith("s_cmp") or mn.startswith("s_bitcmp") or mn.startswith("s_cbranch") or mn in ("s_waitcnt", "s_barrier", "s_branch", "s_endpgm", "s_setpc_b64", "s_sleep", "s_setprio"):
            d["r"] = regs(",".join(ops))
        else:
            d["w"] = regs(ops[0]) if ops else set(); d["r"] = regs(",".join(ops[1:]))
        return d
    return d


def check_hazards(lines, name=""):
    ins = [p for p in (parse(l) for l in lines) if p]
    errs = []
    pos = []
    c = 0
    for p in ins:
        pos.append(c)
        c += p["states"]

    def dist(a, b):
        return pos[b] - pos[a] - ins[a]["states"]

    W = 24
    for b, q in enumerate(ins):
        for a in range(b - 1, max(-1, b - W), -1):
            p = ins[a]
            dd = dist(a, b)
            if dd >= 20:
                break
            need = 0
            why = ""
            vw = {x for x in p["w"] if x[0] in "va"}
            sw = {x for x in p["w"] if x[0] == "s"}
            if p["kind"] == "mfma":
                n1 = {4: 8, 8: 12}[p["passes"]]
                if q["kind"] == "mfma":
                    if p["w"] & (q["A"] | q["B"]):
                        need, why = n1, "mfmaD->mfma A/B"
                    elif p["w"] & q["C"] and p["w"] != q["C"]:
                        need, why = {4: 6, 8: 10}[p["passes"]], "mfmaD->mfma C overlap"
                    elif p["w"] & q["w"] and p["w"] != q["C"]:
                        need, why = n1, "mfmaD->mfma WAW (conservative)"
                elif q["kind"] in ("valu", "vmem", "ds"):
                    if p["w"] & (q["r"] | q["w"]):
                        need, why = n1, "mfmaD->valu/mem"
                    elif q["kind"] == "valu" and p["C"] & q["w"]:
                        need, why = {4: 3, 8: 7}[p["passes"]], "mfma C read -> valu write"
            if p["kind"] == "valu":
                if q["kind"] == "mfma" and vw & q["r"]:
                    need, why = 2, "valu->mfma"
                if q["kind"] == "valu":
                    if p.get("trans") and not q.get("trans") and vw & q["r"]:
                        need, why = max(need, 1), "trans->valu"
                    if q.get("perm") and vw & q["r"]:
                        need, why = 2, "valu->permlane"
                    if q.get("dpp") and vw & q["r"]:
                        need, why = 2, "valu->dpp"
                    if q.get("rl") and vw & q["r"]:
                        need, why = max(need, 1), "valu->readlane"
                    if sw & q["r"]:
                        need, why = 2, "valu sgpr->valu"
                if q["kind"] == "vmem" and sw & q["r"]:
                    need, why = 5, "valu sgpr->vmem"
                if q["kind"] == "salu" and sw & q["r"] and not q["mn"].startswith("s_cbranch"):
                    need, why = 1, "valu sgpr->salu (pad)"
            if p["kind"] == "salu" and ("s", "m0") in p["w"] and q.get("dma"):
                need, why = 1, "m0->dma"
            if p.get("sdata") and q["kind"] in ("valu", "mfma", "ds", "vmem") and p["sdata"] & q["w"]:
                need, why = 2, "store data WAR"
            if need > dd:
                errs.append(f"{name}: need {need} have {dd} [{why}]\n    {p['line']}\n    {q['line']}")
    return errs


def check_waits(lines, name=""):
    errs = []
    vmq, lgq = [], []
    for l in lines:
        p = parse(l)
        if not p:
            continue
        if p["mn"] == "s_waitcnt":
            m = re.search(r"vmcnt\((\d+)\)", p["line"])
            if m:
                n = int(m.group(1))
                vmq = vmq[len(vmq) - n:] if n < len(vmq) else vmq
                if n == 0:
                    vmq = []
            m = re.search(r"lgkmcnt\((\d+)\)", p["line"])
            if m:
                n = int(m.group(1))
                lgq = lgq[len(lgq) - n:] if n < len(lgq) else lgq
                if n == 0:
                    lgq = []
            continue
        touched = {x for x in (p["r"] | p["w"]) if x[0] in "va"}
        for q, nm in ((vmq, "vm"), (lgq, "lgkm")):
            for dst, src in q:
                if dst & touched:
                    errs.append(f"{name}: {nm} result used early\n    {src}\n    {p['line']}")
        if p["kind"] == "vmem" and p["mn"] not in ("buffer_inv", "buffer_wbl2"):
            vmq.append(({x for x in p["w"] if x[0] in "va"}, p["line"]))
        elif p["kind"] == "ds":
            lgq.append(({x for x in p["w"] if x[0] in "va"}, p["line"]))
            if len(lgq) > 15:
                errs.append(f"{name}: more than 15 LDS ops in flight at {p['line']}")
    return errs
```

```python
import re, sys

TRANS = ("v_exp_f32", "v_log_f32", "v_rcp_f32", "v_rsq_f32", "v_sqrt_f32")


class Em:
    def __init__(self):
        self.lines = []
        self.vm_n = 0
        self.vm_tag = {}
        self.vm_done = 0

    def i(self, text):
        for t in text.split("\n"):
            t = t.strip()
            if t:
                self.lines.append(t)

    def c(self, text):
        self.lines.append("; " + text)

    def label(self, name):
        self.lines.append(name + ":")

    def vm(self, text, tag=None):
        self.lines.append(text)
        self.vm_n += 1
        if self.vm_n - self.vm_done > 63 and getattr(self, "strict", False):
            print("VMCNT overflow risk at", text, file=sys.stderr)
        if tag is not None:
            self.vm_tag[tag] = self.vm_n

    def wvm(self, *tags, lgkm=False, cap=63):
        idx = max([self.vm_tag[t] for t in tags] + [0, self.vm_n - cap])
        if idx <= self.vm_done:
            if lgkm:
                self.lines.append("s_waitcnt lgkmcnt(0)")
            return False
        n = min(self.vm_n - idx, 63)
        self.lines.append(f"s_waitcnt vmcnt({n})" + (" lgkmcnt(0)" if lgkm else ""))
        self.vm_done = max(self.vm_done, self.vm_n - n)
        return True

    def wvm_all(self):
        self.lines.append("s_waitcnt vmcnt(0)")
        self.vm_done = self.vm_n

    def covered(self, tag):
        return self.vm_tag[tag] <= self.vm_done

    def do(self, obj):
        if callable(obj):
            obj(self)
        else:
            self.i(obj)


def WVM(*tags, lgkm=False, cap=63):
    return lambda e: e.wvm(*tags, lgkm=lgkm, cap=cap)


def kind_of(t):
    m = t.split()[0]
    if m.startswith("buffer_") or m.startswith("global_"):
        return "D", 12
    if m.startswith("ds_write"):
        return "D", 12
    if m.startswith("ds_"):
        return "d", 4
    if m.startswith("v_"):
        return "v", (8 if any(m.startswith(x) for x in TRANS) else 4)
    return "s", 4


class VMop:
    def __init__(self, text, tag=None):
        self.text, self.tag = text, tag

    def __call__(self, e):
        e.vm(self.text, self.tag)


class Item:
    __slots__ = ("pos", "kind", "cost", "obj", "stream", "dl", "sep", "after", "g", "gid", "late")

    def __init__(self, pos, obj, stream=None, dl=None, sep=0, kind=None, cost=None):
        self.pos, self.obj, self.stream, self.dl, self.sep = pos, obj, stream, dl, sep
        self.after, self.g, self.gid, self.late = [], None, None, False
        if kind is None:
            if isinstance(obj, VMop):
                kind, cost = "D", 12
            elif isinstance(obj, str) and "\n" not in obj:
                k, c = kind_of(obj)
                kind, cost = k, (c if cost is None else cost)
            elif isinstance(obj, str):
                ks = [kind_of(x) for x in obj.split("\n")]
                assert all(k == "s" for k, _ in ks), obj
                kind, cost = "s", 4 * len(ks)
            else:
                raise ValueError("kind needed")
        self.kind, self.cost = kind, cost


RANK = {"s": 0, "D": 1, "d": 2, "v": 3}


def pack(em, mf, items, pins=None, full=None, name="", verbose=False, labels=None, nos=(), exact=False):
    pins, full, labels = pins or {}, full or {}, labels or {}
    N = len(mf)
    sfree = [True] * N
    bud = [8] * N
    gaps = [[] for _ in range(N)]
    for g in pins:
        sfree[g] = False
    for g in full:
        sfree[g] = False
        bud[g] = 0
    last = {}
    over = 0

    def order_ok(g, it):
        return all(RANK[o.kind] <= RANK[it.kind] and not o.late for o in gaps[g] if o.stream == it.stream and it.stream is not None)

    def fits(g, it):
        if g in full or not order_ok(g, it) or (g in nos and it.kind in "sD"):
            return False
        if it.kind == "D":
            return sfree[g] and bud[g] == 8
        if it.kind == "s":
            need = it.cost - (4 if sfree[g] else 0)
            return bud[g] >= need and (bud[g] > 0 or need == 0) and not any(o.kind == "D" for o in gaps[g])
        return bud[g] >= it.cost

    seen, cur = {}, {}
    for it in sorted(items, key=lambda x: x.pos):
        if it.gid is not None and it.stream in ("dma", "st"):
            if cur.get(it.stream) != it.gid:
                assert it.gid not in seen.setdefault(it.stream, set()), (name, "interleaved groups in stream", it.stream, it.obj, it.pos)
                seen[it.stream].add(it.gid)
                cur[it.stream] = it.gid
        g = max(0, int(it.pos))
        if it.stream is not None and it.stream in last:
            g = max(g, last[it.stream] + it.sep)
        for d in it.after:
            assert d.g is not None, (name, "dependency placed later", it.obj, d.obj)
            g = max(g, d.g + 1)
        dl = N - 1 if it.dl is None else min(it.dl, N - 1)
        assert g <= dl, (name, "cannot meet deadline", it.obj, g, dl)
        g0 = g
        while g <= dl and (g in full if exact else not fits(g, it)):
            g += 1
        if exact and g <= dl:
            if it.kind == "D" and not order_ok(g, it) and g + 1 <= dl and g + 1 not in full:
                g += 1
            it.late = not order_ok(g, it)
        elif g > dl:
            cand = [x for x in range(g0, dl + 1) if x not in full and order_ok(x, it) and not (x in nos and it.kind in "sD")]
            if not cand:
                cand = [x for x in range(g0, dl + 1) if x not in full and not (x in nos and it.kind in "sD")]
                it.late = True
            assert cand, (name, it.obj)
            g = max(cand, key=lambda x: (bud[x] + (4 if sfree[x] else 0), -x))
            over += 1
        if it.kind == "D":
            bud[g] -= 8 + (0 if sfree[g] else 4)
            sfree[g] = False
        elif it.kind == "s":
            bud[g] -= it.cost - (4 if sfree[g] else 0)
            sfree[g] = False
        else:
            bud[g] -= it.cost
        gaps[g].append(it)
        it.g = g
        if it.stream is not None:
            last[it.stream] = g
    excess = sum(-c for c in bud if c < 0)
    if verbose or over:
        print(f"[pack {name}] N={N} overflow_items={over} excess_cycles={excess} free={sum(c for c in bud if c > 0)}", file=sys.stderr)
    for k in range(N):
        if k in labels:
            em.label(labels[k])
        em.i(mf[k])
        if k in pins:
            em.do(pins[k])
        for o in full.get(k, []):
            em.do(o)
        for it in sorted(gaps[k], key=lambda x: 9 if x.late else RANK[x.kind]):
            em.do(it.obj)


_REG = re.compile(r"\b([vas])(\d+)\b|\b([vas])\[(\d+):(\d+)\]")


def regs(op):
    out = set()
    for m in _REG.finditer(op):
        if m.group(1):
            out.add((m.group(1), int(m.group(2))))
        else:
            for r in range(int(m.group(4)), int(m.group(5)) + 1):
                out.add((m.group(3), r))
    if re.search(r"\bvcc\b", op):
        out.add(("s", "vcc"))
    if re.search(r"\bm0\b", op):
        out.add(("s", "m0"))
    if re.search(r"\bexec\b", op):
        out.add(("s", "exec"))
    return out


def parse(line):
    s = line.split(";")[0].strip()
    if not s or s.endswith(":") or s.startswith("."):
        return None
    parts = s.split(None, 1)
    mn = parts[0]
    ops = [o.strip() for o in parts[1].split(",")] if len(parts) > 1 else []
    d = dict(mn=mn, w=set(), r=set(), kind="other", line=s, states=1)
    if mn == "s_nop":
        d["states"] = int(ops[0]) + 1
        return d
    if mn.startswith("v_mfma"):
        d["kind"] = "mfma"
        d["w"] = regs(ops[0]); d["A"] = regs(ops[1]); d["B"] = regs(ops[2]); d["C"] = regs(ops[3])
        d["r"] = d["A"] | d["B"] | d["C"]
        d["passes"] = 4 if "16x16" in mn else 8
        return d
    if mn.startswith("buffer_") or mn.startswith("global_"):
        d["kind"] = "vmem"
        lds = s.endswith(" lds") or " lds " in s
        if mn.startswith("buffer_load") and lds:
            d["r"] = regs(",".join(ops)) | {("s", "m0")}
            d["dma"] = True
        elif "load" in mn:
            d["w"] = regs(ops[0]); d["r"] = regs(",".join(ops[1:]))
        elif mn in ("buffer_inv", "buffer_wbl2"):
            pass
        else:
            d["r"] = regs(",".join(ops))
            if mn.endswith("x4") or mn.endswith("x3"):
                d["sdata"] = regs(ops[0])
        return d
    if mn.startswith("ds_"):
        d["kind"] = "ds"
        if mn.startswith("ds_read") or mn.startswith("ds_bpermute") or mn.startswith("ds_swizzle"):
            d["w"] = regs(ops[0]); d["r"] = regs(",".join(ops[1:]))
        else:
            d["r"] = regs(",".join(ops))
        return d
    if mn.startswith("v_"):
        d["kind"] = "valu"
        if mn.startswith("v_cmp"):
            d["w"] = regs(ops[0]); d["r"] = regs(",".join(ops[1:]))
        elif mn.startswith("v_permlane"):
            d["w"] = regs(ops[0]) | regs(ops[1]); d["r"] = set(d["w"]); d["perm"] = True
        elif mn.startswith("v_readfirstlane") or mn.startswith("v_readlane"):
            d["w"] = regs(ops[0]); d["r"] = regs(",".join(ops[1:])); d["rl"] = True
        else:
            d["w"] = regs(ops[0]); d["r"] = regs(",".join(ops[1:]))
            if mn.startswith("v_fmac") or mn.startswith("v_dot2c"):
                d["r"] |= d["w"]
        if "dpp" in mn or "row_" in s:
            d["dpp"] = True
            d["r"] |= d["w"]
        d["trans"] = any(mn.startswith(t) for t in TRANS)
        return d
    if mn.startswith("s_"):
        d["kind"] = "salu"
        if mn.startswith("s_cmp") or mn.startswith("s_bitcmp") or mn.startswith("s_cbranch") or mn in ("s_waitcnt", "s_barrier", "s_branch", "s_endpgm", "s_setpc_b64", "s_sleep", "s_setprio"):
            d["r"] = regs(",".join(ops))
        else:
            d["w"] = regs(ops[0]) if ops else set(); d["r"] = regs(",".join(ops[1:]))
        return d
    return d


def check_hazards(lines, name=""):
    ins = [p for p in (parse(l) for l in lines) if p]
    errs = []
    pos = []
    c = 0
    for p in ins:
        pos.append(c)
        c += p["states"]

    def dist(a, b):
        return pos[b] - pos[a] - ins[a]["states"]

    W = 24
    for b, q in enumerate(ins):
        for a in range(b - 1, max(-1, b - W), -1):
            p = ins[a]
            dd = dist(a, b)
            if dd >= 20:
                break
            need = 0
            why = ""
            vw = {x for x in p["w"] if x[0] in "va"}
            sw = {x for x in p["w"] if x[0] == "s"}
            if p["kind"] == "mfma":
                n1 = {4: 8, 8: 12}[p["passes"]]
                if q["kind"] == "mfma":
                    if p["w"] & (q["A"] | q["B"]):
                        need, why = n1, "mfmaD->mfma A/B"
                    elif p["w"] & q["C"] and p["w"] != q["C"]:
                        need, why = {4: 6, 8: 10}[p["passes"]], "mfmaD->mfma C overlap"
                    elif p["w"] & q["w"] and p["w"] != q["C"]:
                        need, why = n1, "mfmaD->mfma WAW (conservative)"
                elif q["kind"] in ("valu", "vmem", "ds"):
                    if p["w"] & (q["r"] | q["w"]):
                        need, why = n1, "mfmaD->valu/mem"
                    elif q["kind"] == "valu" and p["C"] & q["w"]:
                        need, why = {4: 3, 8: 7}[p["passes"]], "mfma C read -> valu write"
            if p["kind"] == "valu":
                if q["kind"] == "mfma" and vw & q["r"]:
                    need, why = 2, "valu->mfma"
                if q["kind"] == "valu":
                    if p.get("trans") and not q.get("trans") and vw & q["r"]:
                        need, why = max(need, 1), "trans->valu"
                    if q.get("perm") and vw & q["r"]:
                        need, why = 2, "valu->permlane"
                    if q.get("dpp") and vw & q["r"]:
                        need, why = 2, "valu->dpp"
                    if q.get("rl") and vw & q["r"]:
                        need, why = max(need, 1), "valu->readlane"
                    if sw & q["r"]:
                        need, why = 2, "valu sgpr->valu"
                if q["kind"] == "vmem" and sw & q["r"]:
                    need, why = 5, "valu sgpr->vmem"
                if q["kind"] == "salu" and sw & q["r"] and not q["mn"].startswith("s_cbranch"):
                    need, why = 1, "valu sgpr->salu (pad)"
            if p["kind"] == "salu" and ("s", "m0") in p["w"] and q.get("dma"):
                need, why = 1, "m0->dma"
            if p.get("sdata") and q["kind"] in ("valu", "mfma", "ds", "vmem") and p["sdata"] & q["w"]:
                need, why = 2, "store data WAR"
            if need > dd:
                errs.append(f"{name}: need {need} have {dd} [{why}]\n    {p['line']}\n    {q['line']}")
    return errs


def check_waits(lines, name=""):
    errs = []
    vmq, lgq = [], []
    for l in lines:
        p = parse(l)
        if not p:
            continue
        if p["mn"] == "s_waitcnt":
            m = re.search(r"vmcnt\((\d+)\)", p["line"])
            if m:
                n = int(m.group(1))
                vmq = vmq[len(vmq) - n:] if n < len(vmq) else vmq
                if n == 0:
                    vmq = []
            m = re.search(r"lgkmcnt\((\d+)\)", p["line"])
            if m:
                n = int(m.group(1))
                lgq = lgq[len(lgq) - n:] if n < len(lgq) else lgq
                if n == 0:
                    lgq = []
            continue
        touched = {x for x in (p["r"] | p["w"]) if x[0] in "va"}
        for q, nm in ((vmq, "vm"), (lgq, "lgkm")):
            for dst, src in q:
                if dst & touched:
                    errs.append(f"{name}: {nm} result used early\n    {src}\n    {p['line']}")
        if p["kind"] == "vmem" and p["mn"] not in ("buffer_inv", "buffer_wbl2"):
            vmq.append(({x for x in p["w"] if x[0] in "va"}, p["line"]))
        elif p["kind"] == "ds":
            lgq.append(({x for x in p["w"] if x[0] in "va"}, p["line"]))
            if len(lgq) > 15:
                errs.append(f"{name}: more than 15 LDS ops in flight at {p['line']}")
    return errs
```
